```python
import torch

def _softmax(x, axis=-1):
    return torch.softmax(x, dim=axis)
def _gelu(x):
    return torch.nn.functional.gelu(x, approximate="tanh")
def _silu(x):
    return torch.nn.functional.silu(x)
def _sigmoid(x):
    return torch.sigmoid(x)
def _layernorm(x, axis=-1, eps=1e-5):
    m = x.mean(dim=axis, keepdim=True)
    v = x.var(dim=axis, keepdim=True, unbiased=False)
    return (x - m) / torch.sqrt(v + eps)
def _scatter_add(tgt, idx, src, axis=0):
    return tgt.clone().index_add_(axis, idx, src)
def _segment_sum(src, seg, n):
    out = torch.zeros((n,) + src.shape[1:], dtype=src.dtype)
    return out.index_add_(0, seg, src)
def _pad(x, pw):
    flat = tuple(v for pair in reversed(pw) for v in pair)
    return torch.nn.functional.pad(x, flat)

kernel_name = 'standalone__gqa_block_cached__sampling'

def setup_inputs():

    _w = (lambda a: (lambda t: t.to(torch.bfloat16) if t.is_floating_point() else t)(torch.as_tensor(a)))
    B, Sq, D = 8, 4, 1024
    Hq, Hkv, Sk, Dh = 32, 4, 8192, 128
    assert Hq % Hkv == 0, (Hq, Hkv)
    return {
        "x": _w((lambda *s: torch.randn(*s, dtype=torch.bfloat16) * 0.8)(B, Sq, D)),
        "k_cache": _w((lambda *s: torch.randn(*s, dtype=torch.bfloat16) * 0.8)(B, Hkv, Sk, Dh)),
        "v_cache": _w((lambda *s: torch.randn(*s, dtype=torch.bfloat16) * 0.05)(B, Hkv, Sk, Dh)),
        "wq": _w((lambda *s: torch.randn(*s, dtype=torch.bfloat16) * 0.8)(D, Hq * Dh) * (D ** -0.5)),
        "wo": _w((lambda *s: torch.randn(*s, dtype=torch.bfloat16) * 0.05)(Hq * Dh, D) * ((Hq * Dh) ** -0.5)),
    }

def reference(x, k_cache, v_cache, wq, wo):
    B, Sq, D = x.shape
    Hq, Dh = 32, 128
    Hkv = k_cache.shape[1]
    rep = Hq // Hkv
    q = (lambda x, *d: x.permute(*d))((x @ wq).reshape(B, Sq, Hq, Dh), 0, 2, 1, 3)
    k = (lambda x, n, axis: torch.repeat_interleave(x, n, dim=axis))(k_cache, rep, axis=1)
    v = (lambda x, n, axis: torch.repeat_interleave(x, n, dim=axis))(v_cache, rep, axis=1)
    scores = torch.einsum("bhqd,bhkd->bhqk", q, k) * (Dh ** -0.5)
    p = _softmax(scores, axis=-1)
    o = torch.einsum("bhqk,bhkd->bhqd", p, v)
    return (lambda x, *d: x.permute(*d))(o, 0, 2, 1, 3).reshape(B, Sq, Hq * Dh) @ wo
```

```python
import sys, math, struct

KNAME = "standalone__gqa_block_cached__sampling_kernel"

HEADER = """; Kernarg layout for this problem (64 bytes, ptrs only, base s[0:1]):
"""

WS_Q, WS_ML, WS_OP, WS_OUTP, WS_SIZE = 0, 0x40000, 0x100000, 0x400000, 0x800000
L_P = 0
L_WQ = 0
L_QRED = 32768
L_QT = 49152
L_RING = 65536
R = 10
L_MX = L_RING + R * 8192
L_SM = L_MX + 1024
L_OFR = L_SM + 1024
L_END = L_OFR + 8192

class G:
    def __init__(self, **p):
        self.o = []
        self.vm = []
        self.p = p
        self.nlab = 0
        self.nstamp = 0
    def a(self, s):
        for l in s.split("\n"):
            self.o.append("    " + l.strip() if not l.strip().endswith(":") else l.strip())
    def c(self, s):
        self.o.append("    ; " + s)
    def lab(self, base):
        self.nlab += 1
        return f"L_{base}_{self.nlab}"
    def vmop(self, s, tag):
        self.a(s); self.vm.append(tag)
    def after(self, tag):
        idx = max(i for i, t in enumerate(self.vm) if t == tag)
        return len(self.vm) - 1 - idx
    def waitvm(self, tag):
        n = self.after(tag)
        assert n <= 63
        self.a(f"s_waitcnt vmcnt({n})")
    def throttle(self, D):
        self.a(f"s_waitcnt vmcnt({D-1})")
    def nop(self, n):
        while n > 0:
            k = min(n, 16)
            self.a(f"s_nop {k-1}")
            n -= k
    def stamp(self):
        if not self.p.get("stamps"): return
        i = self.nstamp; self.nstamp += 1
        self.a(f"s_memrealtime s[60:61]\ns_waitcnt lgkmcnt(0)\nv_writelane_b32 v15, s60, {i}")

def srd(g, base, plo, size):
    g.a(f"s_mov_b32 s{base}, s{plo}\ns_and_b32 s{base+1}, s{plo+1}, 0xffff\ns_mov_b32 s{base+2}, {size:#x}\ns_mov_b32 s{base+3}, 0x20000")

X, K, V, WQ, WO, OUT, DBG, WS = "s[8:11]", "s[12:15]", "s[16:19]", "s[20:23]", "s[24:27]", "s[28:31]", "s[32:35]", "s[36:39]"

def gen(**p):
    D = p.get("D", 4)
    D0 = p.get("D0", 4)
    POLL_AT = p.get("POLL_AT", 18)
    QLD_AT = p.get("QLD_AT", 22)
    B2_AT = p.get("B2_AT", 26)
    PD0 = p.get("PD0", 7)
    PD = p.get("PD", 5)
    NT = p.get("NT", "nt")
    WNT = p.get("WNT", NT)
    MAP = p.get("MAP", 1)
    WPOS = p.get("WPOS", 32)
    UF = p.get("UF", 8)
    UML = p.get("UML", 20)
    SPIN = p.get("SPIN", 200000)
    g = G(**p)
    a = g.a
    a(f"s_cmp_ge_u32 s2, 256\ns_cbranch_scc1 L_exit")
    a("s_load_dwordx16 s[64:79], s[0:1], 0")
    if p.get("stamps"):
        a("v_mov_b32 v15, 0")
    a("v_lshrrev_b32 v1, 6, v0")
    a("v_and_b32 v0, 63, v0")
    a("v_readfirstlane_b32 s3, v1")
    a("s_and_b32 s4, s2, 7\ns_lshr_b32 s5, s2, 3")
    a("s_lshl_b32 s41, s4, 5\ns_add_u32 s41, s41, s5")
    if MAP == 1:
        a("s_mov_b32 s6, s41")
    else:
        a("s_mov_b32 s6, s2")
    a("s_lshl_b32 s40, s6, 18")
    a("s_lshr_b32 s42, s6, 5")
    a("s_lshr_b32 s43, s6, 3\ns_and_b32 s43, s43, 3")
    a("s_and_b32 s44, s6, 7")
    a("s_lshl_b32 s45, s4, 2\ns_and_b32 s7, s5, 3\ns_add_u32 s45, s45, s7")
    a("s_lshr_b32 s46, s2, 5")
    a("v_and_b32 v6, 15, v0")
    a("v_lshrrev_b32 v7, 4, v0")
    a("v_lshlrev_b32 v3, 4, v0")
    a("v_lshlrev_b32 v8, 4, v7")
    a("v_lshl_add_u32 v1, v6, 8, v8")
    a("v_lshl_add_u32 v9, v6, 11, v8")
    a("v_lshrrev_b32 v10, 1, v0\nv_lshlrev_b32 v10, 13, v10\nv_and_b32 v11, 1, v0\nv_lshl_add_u32 v10, v11, 4, v10")
    a("s_lshl_b32 s47, s3, 13\ns_add_u32 s47, s47, s40")
    a("s_lshl_b32 s48, s3, 10\ns_add_u32 s49, s48, %d\ns_add_u32 s48, s48, s40" % L_RING)
    a("s_lshl_b32 s52, s3, 20\ns_lshl_b32 s53, s41, 5\ns_add_u32 s52, s52, s53")
    a("s_lshl_b32 s53, s3, 12")
    a("s_lshl_b32 s54, s3, 8")
    a("s_add_u32 s55, s54, 0x8000")
    a("s_waitcnt lgkmcnt(0)")
    g.stamp()
    srd(g, 20, 70, 0x800000)
    srd(g, 8, 64, 0x10000)
    for i in range(4):
        a(f"s_add_u32 m0, s53, {L_WQ + i*1024}")
        a(f"s_add_u32 s56, s52, {i*32*8192}")
        g.vmop(f"buffer_load_dwordx4 v10, {WQ}, s56 offen {p.get('QNT', NT)} lds", "wq")
    for rt in range(2):
        for s in range(4):
            r = 64 + (rt*4+s)*4
            g.vmop(f"buffer_load_dwordx4 v[{r}:{r+3}], v9, {X}, s{54+rt} offen offset:{s*64}", "x")
    srd(g, 12, 66, 0x4000000)
    srd(g, 36, 78, WS_SIZE)
    def kload(i):
        t, hf, s = i >> 3, (i >> 2) & 1, i & 3
        if s == 0:
            a(f"s_add_u32 s57, s47, {t*65536 + hf*4096}")
        r = 128 + i*4
        g.vmop(f"buffer_load_dwordx4 v[{r}:{r+3}], v1, {K}, s57 offen offset:{s*64} {NT}", f"k{i}")
    a("v_mov_b32 v24, -1\nv_mov_b32 v25, -1\nv_mov_b32 v26, -1\nv_mov_b32 v27, -1")
    a(f"s_lshl_b32 s58, s43, 19\ns_lshl_b32 s4, s44, 13\ns_add_u32 s58, s58, s4\ns_lshl_b32 s4, s42, 10\ns_add_u32 s58, s58, s4\ns_add_u32 s58, s58, {WS_OP:#x}")
    a("s_lshl_b32 s4, s3, 16\ns_add_u32 s4, s4, s58")
    g.vmop(f"buffer_store_dwordx4 v[24:27], v3, {WS}, s4 offen sc1", "clr")
    a(f"s_lshl_b32 s59, s46, 3\ns_add_u32 s59, s59, s3\ns_lshl_b32 s59, s59, 6\ns_add_u32 s59, s59, s45\ns_lshl_b32 s59, s59, 10\ns_add_u32 s59, s59, {WS_OUTP:#x}")
    g.vmop(f"buffer_store_dwordx4 v[24:27], v3, {WS}, s59 offen sc1", "clr")
    a("s_add_u32 s4, s59, 0x8000")
    g.vmop(f"buffer_store_dwordx4 v[24:27], v3, {WS}, s4 offen sc1", "clr")
    a("v_lshrrev_b32 v12, 2, v0\nv_lshlrev_b32 v12, 11, v12\nv_and_b32 v11, 3, v0\nv_lshl_add_u32 v12, v11, 6, v12")
    a(f"s_lshl_b32 s62, s43, 14\ns_lshl_b32 s4, s42, 8\ns_add_u32 s62, s62, s4\ns_lshl_b32 s4, s44, 3\ns_add_u32 s62, s62, s4\ns_add_u32 s62, s62, {WS_ML:#x}")
    lab = g.lab("noml")
    a(f"s_cmp_lg_u32 s3, 0\ns_cbranch_scc1 {lab}")
    a("s_mov_b64 exec, 0xffffffff")
    a(f"buffer_store_dwordx2 v[24:25], v12, {WS}, s62 offen sc1")
    a("s_mov_b64 exec, -1")
    a(f"{lab}:")
    for i in range(D0):
        kload(i)
    srd(g, 16, 68, 0x4000000)
    srd(g, 24, 72, 0x800000)
    srd(g, 28, 74, 0x10000)
    srd(g, 32, 76, 0x100)
    a("v_lshrrev_b32 v13, 2, v6")
    a("v_and_b32 v14, 3, v6")
    a("v_lshl_add_u32 v11, v7, 3, v13\nv_lshlrev_b32 v11, 5, v11\nv_lshl_add_u32 v11, v14, 3, v11\nv_add_u32 v11, s53, v11")
    a("s_and_b32 s4, s3, 1\ns_lshl_b32 s4, s4, 2")
    a("v_add_u32 v2, s4, v7\nv_lshlrev_b32 v2, 1, v2\nv_xor_b32 v2, v2, v6\nv_lshlrev_b32 v2, 4, v2\nv_lshl_add_u32 v2, v7, 8, v2")
    a("v_and_b32 v28, 1, v7\nv_lshl_add_u32 v28, v28, 2, v13\nv_xor_b32 v28, s3, v28\nv_lshlrev_b32 v28, 5, v28\nv_lshl_add_u32 v28, v14, 3, v28")
    a(f"v_lshl_add_u32 v4, v7, 2, v13\nv_lshl_add_u32 v4, v4, 8, v28\nv_add_u32 v4, {L_RING}, v4")
    a(f"v_add_u32 v5, {5*8192}, v4")
    a(f"v_lshl_add_u32 v29, v7, 3, v13\nv_lshl_add_u32 v29, v29, 8, v28\nv_add_u32 v29, {L_RING}, v29")
    a("s_lshr_b32 s4, s3, 1\ns_and_b32 s4, s4, 1\ns_lshl_b32 s4, s4, 2")
    a("v_add_u32 v30, s4, v7\nv_lshlrev_b32 v30, 1, v30\nv_xor_b32 v30, v30, v6\nv_lshlrev_b32 v30, 4, v30\nv_lshl_add_u32 v30, v7, 11, v30")
    a("s_lshl_b32 s63, s45, 18\ns_lshl_b32 s4, s3, 13\ns_add_u32 s63, s63, s4\ns_lshl_b32 s4, s46, 8\ns_add_u32 s63, s63, s4")
    a("s_lshl_b32 s4, s3, 11\nv_add_u32 v31, s4, v3")
    sc = math.log2(math.e) / math.sqrt(128.0)
    a(f"s_mov_b32 s50, {struct.unpack('<I', struct.pack('<f', sc))[0]:#x}")
    g.c("q projection")
    g.waitvm("wq")
    for s in range(4):
        for hf in range(2):
            r = 96 + s*4 + hf*2
            a(f"ds_read_b64_tr_b16 v[{r}:{r+1}], v11 offset:{s*1024 + hf*128}")
    g.waitvm("x")
    a("s_waitcnt lgkmcnt(0)")
    g.stamp()
    for s in range(4):
        for rt in range(2):
            d = 112 + rt*4
            xr = 64 + (rt*4+s)*4
            wr = 96 + s*4
            cc = "0" if s == 0 else f"v[{d}:{d+3}]"
            a(f"v_mfma_f32_16x16x32_bf16 v[{d}:{d+3}], v[{wr}:{wr+3}], v[{xr}:{xr+3}], {cc}")
    g.nop(8)
    a(f"ds_write_b128 v31, v[112:115] offset:{L_QRED}")
    a(f"ds_write_b128 v31, v[116:119] offset:{L_QRED+1024}")
    g.waitvm("clr")
    a("s_waitcnt lgkmcnt(0)")
    a("s_barrier")
    lab = g.lab("noqred")
    a(f"s_cmp_lg_u32 s3, 0\ns_cbranch_scc1 {lab}")
    for w in range(8):
        for rt in range(2):
            r = 64 + (w*2+rt)*4
            a(f"ds_read_b128 v[{r}:{r+3}], v3 offset:{L_QRED + w*2048 + rt*1024}")
    a("v_and_b32 v24, 1, v7\nv_lshl_add_u32 v24, v24, 2, v13\nv_lshlrev_b32 v24, 15, v24\nv_lshrrev_b32 v25, 1, v7\nv_lshl_add_u32 v24, v25, 8, v24\nv_lshl_add_u32 v24, v14, 4, v24")
    a("s_lshr_b32 s4, s41, 6\ns_lshl_b32 s4, s4, 13")
    a("s_lshr_b32 s5, s41, 5\ns_and_b32 s5, s5, 1\ns_lshl_b32 s5, s5, 10\ns_add_u32 s4, s4, s5")
    a("s_and_b32 s5, s41, 6\ns_lshl_b32 s5, s5, 10\ns_add_u32 s4, s4, s5")
    a("s_and_b32 s5, s41, 1\ns_lshl_b32 s5, s5, 9\ns_add_u32 s4, s4, s5")
    a("s_lshr_b32 s5, s41, 3\ns_and_b32 s5, s5, 3\ns_lshl_b32 s5, s5, 6\ns_add_u32 s4, s4, s5")
    for w in range(1, 8):
        a(f"s_waitcnt lgkmcnt({min(15, 2*(7-w))})")
        for k in range(8):
            a(f"v_add_f32 v{64+k}, v{64+k}, v{64+w*8+k}")
    a("v_cvt_pk_bf16_f32 v72, v64, v65\nv_cvt_pk_bf16_f32 v73, v66, v67\nv_cvt_pk_bf16_f32 v74, v68, v69\nv_cvt_pk_bf16_f32 v75, v70, v71")
    g.nop(2)
    a("v_permlane16_swap_b32 v72, v74\nv_permlane16_swap_b32 v73, v75")
    a(f"buffer_store_dwordx4 v[72:75], v24, {WS}, s4 offen sc1")
    a("v_mov_b32 v25, 1\nv_mov_b32 v26, s41")
    a("s_waitcnt vmcnt(0)")
    a("s_mov_b64 exec, 1")
    a(f"buffer_store_byte v25, v26, {DBG}, 0 offen sc1")
    a("s_mov_b64 exec, -1")
    a(f"{lab}:")
    g.stamp()
    g.c("K stream")
    a("v_lshlrev_b32 v10, 2, v0")
    a("s_lshl_b32 s4, s43, 4\ns_bfm_b64 s[52:53], 16, s4")
    a("s_lshl_b32 s54, s42, 2\ns_add_u32 s54, s54, s43\ns_lshl_b32 s54, s54, 13\ns_lshl_b32 s4, s3, 10\ns_add_u32 s54, s54, s4")
    a(f"s_mov_b32 s51, {SPIN}")
    for i in range(D0, 32):
        if i == POLL_AT:
            g.vmop(f"buffer_load_dword v9, v10, {DBG}, 0 offen sc1", "poll")
        if i == QLD_AT:
            g.waitvm("poll")
            l1, l2 = g.lab("qpoll"), g.lab("qok")
            a(f"{l1}:")
            a("v_cmp_ne_u32 vcc, 0x01010101, v9")
            a("s_and_b64 vcc, vcc, s[52:53]")
            a(f"s_cbranch_scc0 {l2}")
            a(f"buffer_load_dword v9, v10, {DBG}, 0 offen sc1")
            a("s_sub_u32 s51, s51, 1")
            a("s_waitcnt vmcnt(0)")
            a(f"s_cbranch_scc0 {l1}")
            a(f"{l2}:")
            g.stamp()
            g.vmop(f"buffer_load_dwordx4 v[24:27], v3, {WS}, s54 offen sc1", "qld")
        if i < B2_AT:
            g.throttle(D)
        kload(i)
    g.waitvm("qld")
    a("s_lshl_b32 s4, s3, 10\nv_add_u32 v9, s4, v3")
    a(f"ds_write_b128 v9, v[24:27] offset:{L_QT}")
    a("s_waitcnt lgkmcnt(0)")
    a("s_barrier")
    for f in range(8):
        a(f"ds_read_b128 v[{32+f*4}:{35+f*4}], v3 offset:{L_QT + f*1024}")
    items = [("v", u) for u in range(32)]
    items[WPOS:WPOS] = [("w", s) for s in range(4)]
    slot_of = {it: n % R for n, it in enumerate(items)}
    nissued = [0]
    def issue_item():
        n = nissued[0]
        if n >= len(items): return
        kind, u = items[n]
        a(f"s_add_u32 m0, s49, {(n % R)*8192}")
        if kind == "v":
            a(f"s_add_u32 s57, s48, {u*8192}")
            g.vmop(f"buffer_load_dwordx4 v2, {V}, s57 offen {NT} lds", f"v{u}")
        else:
            a(f"s_add_u32 s57, s63, {u*32*2048}")
            g.vmop(f"buffer_load_dwordx4 v30, {WO}, s57 offen {WNT} lds", f"w{u}")
        nissued[0] += 1
    def S(t, hf, qt): return 64 + ((t*2+hf)*2+qt)*4
    a("s_waitcnt lgkmcnt(0)")
    g.stamp()
    per_blk = [(PD0 + 2) // 3, (PD0 + 1) // 3, PD0 // 3, 0]
    for t in range(4):
        for hf in range(2):
            g.waitvm(f"k{t*8+hf*4+3}")
            for s in range(4):
                for qt in range(2):
                    d = S(t, hf, qt)
                    kr = 128 + (t*8+hf*4+s)*4
                    qr = 32 + (qt + 2*s)*4
                    cc = "0" if s == 0 else f"v[{d}:{d+3}]"
                    a(f"v_mfma_f32_16x16x32_bf16 v[{d}:{d+3}], v[{kr}:{kr+3}], v[{qr}:{qr+3}], {cc}")
        for _ in range(per_blk[t]):
            issue_item()
        if t >= 1:
            tp = t - 1
            for qt in range(2):
                vals = [S(tp, hf, qt) + r for hf in range(2) for r in range(4)]
                m = 24 + qt
                if tp == 0:
                    a(f"v_max3_f32 v{m}, v{vals[0]}, v{vals[1]}, v{vals[2]}")
                    a(f"v_max3_f32 v{m}, v{m}, v{vals[3]}, v{vals[4]}")
                    a(f"v_max3_f32 v{m}, v{m}, v{vals[5]}, v{vals[6]}")
                    a(f"v_max_f32 v{m}, v{m}, v{vals[7]}")
                else:
                    for k in range(0, 8, 2):
                        a(f"v_max3_f32 v{m}, v{m}, v{vals[k]}, v{vals[k+1]}")
    g.stamp()
    g.nop(8)
    for qt in range(2):
        vals = [S(3, hf, qt) + r for hf in range(2) for r in range(4)]
        m = 24 + qt
        for k in range(0, 8, 2):
            a(f"v_max3_f32 v{m}, v{m}, v{vals[k]}, v{vals[k+1]}")
    a("v_and_b32 v26, 31, v0\nv_lshlrev_b32 v26, 5, v26\ns_lshl_b32 s4, s3, 2\nv_add_u32 v27, s4, v26")
    a(f"v_add_u32 v27, {L_MX}, v27")
    a("v_permlane16_swap_b32 v24, v25")
    a("s_nop 0")
    a("v_max_f32 v24, v24, v25")
    a("v_mov_b32 v25, v24")
    g.nop(2)
    a("v_permlane32_swap_b32 v24, v25")
    a("s_nop 0")
    a("v_max_f32 v24, v24, v25")
    a("ds_write_b32 v27, v24")
    a(f"v_lshlrev_b32 v10, 5, v6\nv_add_u32 v10, {L_MX}, v10")
    a("s_waitcnt lgkmcnt(0)")
    a("s_barrier")
    for qt in range(2):
        for hfw in range(2):
            r = 32 + (qt*2+hfw)*4
            a(f"ds_read_b128 v[{r}:{r+3}], v10 offset:{qt*512 + hfw*16}")
    a("s_waitcnt lgkmcnt(0)")
    for qt in range(2):
        r = 32 + qt*8
        m = 24 + qt
        a(f"v_max3_f32 v{m}, v{r}, v{r+1}, v{r+2}")
        a(f"v_max3_f32 v{m}, v{m}, v{r+3}, v{r+4}")
        a(f"v_max3_f32 v{m}, v{m}, v{r+5}, v{r+6}")
        a(f"v_max_f32 v{m}, v{m}, v{r+7}")
        a(f"v_mul_f32 v{m}, s50, v{m}")
    a("v_mov_b32 v48, 0\nv_mov_b32 v49, 0")
    for t in range(4):
        for qt in range(2):
            vals = [S(t, hf, qt) + r for hf in range(2) for r in range(4)]
            for v in vals:
                a(f"v_fma_f32 v{v}, v{v}, s50, -v{24+qt}")
            for v in vals:
                a(f"v_exp_f32 v{v}, v{v}")
            pr = 32 + ((t*2+qt) % 4)*4
            a("s_nop 0")
            for k in range(4):
                a(f"v_cvt_pk_bf16_f32 v{pr+k}, v{vals[2*k]}, v{vals[2*k+1]}")
            a(f"ds_write_b128 v31, v[{pr}:{pr+3}] offset:{L_P + t*16384 + qt*1024}")
            a(f"v_add_f32 v50, v{vals[0]}, v{vals[1]}\nv_add_f32 v51, v{vals[2]}, v{vals[3]}\nv_add_f32 v52, v{vals[4]}, v{vals[5]}\nv_add_f32 v53, v{vals[6]}, v{vals[7]}")
            a(f"v_add_f32 v50, v50, v51\nv_add_f32 v52, v52, v53\nv_add_f32 v50, v50, v52\nv_add_f32 v{48+qt}, v{48+qt}, v50")
            if (t*2+qt) % 4 == 3:
                a("s_waitcnt lgkmcnt(0)")
    g.nop(2)
    a("v_permlane16_swap_b32 v48, v49")
    a("s_nop 0")
    a("v_add_f32 v48, v48, v49")
    a("v_mov_b32 v49, v48")
    g.nop(2)
    a("v_permlane32_swap_b32 v48, v49")
    a("s_nop 0")
    a("v_add_f32 v48, v48, v49")
    a(f"ds_write_b32 v27, v48 offset:{L_SM - L_MX}")
    for k in range(8):
        a(f"v_mov_b32 v{16+k}, 0")
    a("s_waitcnt lgkmcnt(0)")
    a("s_barrier")
    g.stamp()
    lab = g.lab("nomlst")
    a(f"s_cmp_lg_u32 s3, 0\ns_cbranch_scc1 {lab}")
    a(f"v_add_u32 v26, {L_SM}, v26")
    a("ds_read_b128 v[32:35], v26\nds_read_b128 v[36:39], v26 offset:16")
    a("v_and_b32 v40, 16, v0\nv_cmp_ne_u32 vcc, 0, v40")
    g.nop(2)
    a("v_cndmask_b32 v40, v24, v25, vcc")
    a("s_waitcnt lgkmcnt(0)")
    a("v_add_f32 v32, v32, v33\nv_add_f32 v34, v34, v35\nv_add_f32 v36, v36, v37\nv_add_f32 v38, v38, v39\nv_add_f32 v32, v32, v34\nv_add_f32 v36, v36, v38\nv_add_f32 v41, v32, v36")
    a("v_min_u32 v40, -2, v40\nv_min_u32 v41, -2, v41")
    a("s_mov_b64 exec, 0xffffffff")
    a(f"buffer_store_dwordx2 v[40:41], v12, {WS}, s62 offen sc1")
    a("s_mov_b64 exec, -1")
    a(f"{lab}:")
    g.c("V phase")
    def pread(u):
        r = 64 + (u & 1)*8
        a(f"ds_read_b128 v[{r}:{r+3}], v3 offset:{L_P + u*2048}")
        a(f"ds_read_b128 v[{r+4}:{r+7}], v3 offset:{L_P + u*2048 + 1024}")
    def ring_rd(dst, basev_lo, basev_hi, slot, off):
        if slot < 5:
            a(f"ds_read_b64_tr_b16 v[{dst}:{dst+1}], v{basev_lo} offset:{slot*8192 + off}")
        else:
            a(f"ds_read_b64_tr_b16 v[{dst}:{dst+1}], v{basev_hi} offset:{(slot-5)*8192 + off}")
    a(f"v_add_u32 v28, {5*8192}, v29")
    a("v_lshlrev_b32 v10, 2, v0")
    a("v_lshlrev_b32 v11, 6, v6")
    a(f"s_lshl_b32 s55, s45, 11\ns_and_b32 s4, s3, 1\ns_lshl_b32 s4, s4, 10\ns_add_u32 s55, s55, s4\ns_add_u32 s55, s55, {WS_ML:#x}")
    pread(0)
    MLR = 96
    WOR = 128
    nv = 0
    for n, (kind, u) in enumerate(items):
        if kind == "w" and WPOS == 32:
            break
        g.waitvm(f"{kind}{u}")
        a("s_barrier")
        while nissued[0] < min(len(items), n + 1 + PD) and nissued[0] - R <= n - 1:
            issue_item()
        slot = slot_of[(kind, u)]
        if kind == "w":
            for hf in range(2):
                ring_rd(WOR + u*4 + hf*2, 29, 28, slot, hf*1024)
            a("s_waitcnt lgkmcnt(0)")
            continue
        vr = 80 + (u & 1)*4
        for hf in range(2):
            ring_rd(vr + hf*2, 4, 5, slot, hf*4096)
        if u + 1 < 32:
            pread(u + 1)
            a("s_waitcnt lgkmcnt(2)")
        else:
            a("s_waitcnt lgkmcnt(0)")
        pr = 64 + (u & 1)*8
        for qt in range(2):
            a(f"v_mfma_f32_16x16x32_bf16 v[{16+qt*4}:{19+qt*4}], v[{vr}:{vr+3}], v[{pr+qt*4}:{pr+qt*4+3}], v[{16+qt*4}:{19+qt*4}]")
        if u == UF:
            g.vmop(f"buffer_load_dword v9, v10, {DBG}, 0 offen sc1", "poll2")
        if u == UML:
            g.waitvm("poll2")
            l1, l2 = g.lab("fpoll"), g.lab("fok")
            a(f"{l1}:")
            a("v_cmp_ne_u32 vcc, 0x01010101, v9")
            a("s_cmp_eq_u64 vcc, 0")
            a(f"s_cbranch_scc1 {l2}")
            a(f"buffer_load_dword v9, v10, {DBG}, 0 offen sc1")
            a("s_sub_u32 s51, s51, 1")
            a("s_waitcnt vmcnt(0)")
            a(f"s_cbranch_scc0 {l1}")
            a(f"{l2}:")
            for i in range(4):
                g.vmop(f"buffer_load_dwordx4 v[{MLR+i*4}:{MLR+i*4+3}], v11, {WS}, s55 offen offset:{i*16} sc1", "ml")
        if u == UML + PD + 1:
            g.waitvm("ml")
            l1, l2 = g.lab("mlpoll"), g.lab("mlok")
            a(f"{l1}:")
            a(f"v_max3_u32 v24, v{MLR}, v{MLR+1}, v{MLR+2}")
            for k in range(3, 15, 2):
                a(f"v_max3_u32 v24, v24, v{MLR+k}, v{MLR+k+1}")
            a(f"v_max_u32 v24, v24, v{MLR+15}")
            a("v_cmp_eq_u32 vcc, -1, v24")
            a("s_cmp_eq_u64 vcc, 0")
            a(f"s_cbranch_scc1 {l2}")
            for i in range(4):
                a(f"buffer_load_dwordx4 v[{MLR+i*4}:{MLR+i*4+3}], v11, {WS}, s55 offen offset:{i*16} sc1")
            a("s_sub_u32 s51, s51, 1")
            a("s_waitcnt vmcnt(0)")
            a(f"s_cbranch_scc0 {l1}")
            a(f"{l2}:")
            ms = [MLR + 2*c for c in range(8)]
            a(f"v_max3_f32 v24, v{ms[0]}, v{ms[1]}, v{ms[2]}\nv_max3_f32 v24, v24, v{ms[3]}, v{ms[4]}\nv_max3_f32 v24, v24, v{ms[5]}, v{ms[6]}\nv_max_f32 v24, v24, v{ms[7]}")
            for c in range(8):
                a(f"v_sub_f32 v{112+c}, v{ms[c]}, v24")
            for c in range(8):
                a(f"v_exp_f32 v{112+c}, v{112+c}")
            a("s_nop 0")
            a(f"v_mul_f32 v25, v112, v{ms[0]+1}")
            for c in range(1, 8):
                a(f"v_fmac_f32 v25, v{112+c}, v{ms[c]+1}")
            a("v_rcp_f32 v25, v25")
            a("s_nop 0")
            for c in range(8):
                a(f"v_mul_f32 v{112+c}, v{112+c}, v25")
        if u == 26:
            a("v_and_b32 v26, 1, v7\nv_lshl_add_u32 v26, v26, 2, v13\nv_lshlrev_b32 v26, 16, v26\nv_lshl_add_u32 v26, v14, 5, v26\nv_lshrrev_b32 v27, 1, v7\nv_lshl_add_u32 v26, v27, 4, v26")
            a("s_lshl_b32 s4, s3, 7\ns_add_u32 s58, s58, s4")
            a("v_lshlrev_b32 v12, 10, v13\nv_lshl_add_u32 v12, v27, 7, v12\nv_lshl_add_u32 v12, v14, 5, v12\nv_and_b32 v27, 1, v7\nv_lshl_add_u32 v12, v27, 4, v12")
            a(f"s_lshl_b32 s56, s45, 16\ns_and_b32 s4, s3, 1\ns_lshl_b32 s4, s4, 12\ns_add_u32 s56, s56, s4\ns_lshr_b32 s4, s3, 1\ns_lshl_b32 s4, s4, 8\ns_add_u32 s56, s56, s4\ns_add_u32 s56, s56, {WS_OP:#x}")
            for c in range(8):
                a(f"s_mov_b64 s[{80+2*c}:{81+2*c}], -1")
            for k in range(8):
                a(f"v_mov_b32 v{120+k}, 0")
            a(f"s_lshl_b32 s4, s3, 10\ns_add_u32 s4, s4, {L_OFR}\nv_add_u32 v9, s4, v3")
            a(f"v_add_u32 v1, {L_OFR}, v3")
    while nissued[0] < len(items):
        issue_item()
    g.stamp()
    g.c("hop 1 publish")
    g.nop(8)
    a("v_cvt_pk_bf16_f32 v32, v16, v17\nv_cvt_pk_bf16_f32 v33, v18, v19\nv_cvt_pk_bf16_f32 v34, v20, v21\nv_cvt_pk_bf16_f32 v35, v22, v23")
    a("v_min_u32 v32, -2, v32\nv_min_u32 v33, -2, v33\nv_min_u32 v34, -2, v34\nv_min_u32 v35, -2, v35")
    g.nop(2)
    a("v_permlane16_swap_b32 v32, v34\nv_permlane16_swap_b32 v33, v35")
    a(f"buffer_store_dwordx4 v[32:35], v26, {WS}, s58 offen sc1")
    HB = 160
    loop = g.lab("h1")
    a(f"{loop}:")
    for c in range(8):
        sk = g.lab("h1l")
        a(f"s_mov_b64 exec, s[{80+2*c}:{81+2*c}]\ns_cbranch_execz {sk}")
        a(f"s_add_u32 s4, s56, {c*8192}")
        a(f"buffer_load_dwordx4 v[{HB+c*4}:{HB+c*4+3}], v12, {WS}, s4 offen sc1")
        a(f"{sk}:")
    a("s_waitcnt vmcnt(0)")
    for c in range(8):
        sk = g.lab("h1c")
        b = HB + c*4
        a(f"s_mov_b64 exec, s[{80+2*c}:{81+2*c}]\ns_cbranch_execz {sk}")
        a(f"v_max3_u32 v24, v{b}, v{b+1}, v{b+2}\nv_max_u32 v24, v24, v{b+3}")
        a("v_cmp_ne_u32 vcc, -1, v24")
        a(f"s_andn2_b64 s[{80+2*c}:{81+2*c}], s[{80+2*c}:{81+2*c}], vcc")
        a("s_mov_b64 exec, vcc")
        for k in range(4):
            a(f"v_lshlrev_b32 v{36+2*k}, 16, v{b+k}\nv_and_b32 v{37+2*k}, 0xffff0000, v{b+k}")
        for k in range(8):
            a(f"v_fmac_f32 v{120+k}, v{36+k}, v{112+c}")
        a(f"{sk}:")
    a("s_or_b64 s[4:5], s[80:81], s[82:83]\ns_or_b64 s[6:7], s[84:85], s[86:87]\ns_or_b64 s[4:5], s[4:5], s[88:89]\ns_or_b64 s[6:7], s[6:7], s[90:91]\ns_or_b64 s[4:5], s[4:5], s[92:93]\ns_or_b64 s[6:7], s[6:7], s[94:95]\ns_or_b64 s[4:5], s[4:5], s[6:7]")
    done = g.lab("h1done")
    a(f"s_cbranch_scc0 {done}")
    a("s_sub_u32 s51, s51, 1")
    a(f"s_cbranch_scc0 {loop}")
    a(f"{done}:")
    a("s_mov_b64 exec, -1")
    g.stamp()
    for k in range(4):
        a(f"v_cvt_pk_bf16_f32 v{32+k}, v{120+2*k}, v{121+2*k}")
    a("ds_write_b128 v9, v[32:35]")
    a("s_waitcnt lgkmcnt(0)")
    a("s_barrier")
    if WPOS == 32:
        for s in range(4):
            for hf in range(2):
                ring_rd(WOR + s*4 + hf*2, 29, 28, slot_of[("w", s)], hf*1024)
    for f in range(8):
        a(f"ds_read_b128 v[{64+f*4}:{67+f*4}], v1 offset:{f*1024}")
    a("v_lshrrev_b32 v12, 3, v0\nv_lshlrev_b32 v12, 10, v12\nv_and_b32 v27, 7, v0\nv_lshl_add_u32 v12, v27, 4, v12")
    a(f"s_lshr_b32 s56, s2, 1\ns_lshl_b32 s56, s56, 15\ns_and_b32 s4, s2, 1\ns_lshl_b32 s4, s4, 9\ns_add_u32 s56, s56, s4\ns_lshl_b32 s4, s3, 7\ns_add_u32 s56, s56, s4\ns_add_u32 s56, s56, {WS_OUTP:#x}")
    a("s_add_u32 s57, s59, 0x8000")
    for s in range(4):
        a(f"s_waitcnt lgkmcnt({2*(3-s)})")
        for rt in range(2):
            d = 16 + rt*4
            f = 64 + (rt + 2*s)*4
            cc = "0" if s == 0 else f"v[{d}:{d+3}]"
            a(f"v_mfma_f32_16x16x32_bf16 v[{d}:{d+3}], v[{WOR+s*4}:{WOR+s*4+3}], v[{f}:{f+3}], {cc}")
    g.nop(8)
    for k in range(8):
        a(f"v_min_u32 v{16+k}, -2, v{16+k}")
    a(f"buffer_store_dwordx4 v[16:19], v3, {WS}, s59 offen sc1")
    a(f"buffer_store_dwordx4 v[20:23], v3, {WS}, s57 offen sc1")
    g.stamp()
    g.c("hop 2")
    a("s_cmp_ge_u32 s3, 4\ns_cbranch_scc1 L_exit")
    for i in range(4):
        a(f"s_mov_b64 s[{80+2*i}:{81+2*i}], -1")
    for k in range(4):
        a(f"v_mov_b32 v{120+k}, 0")
    a("v_lshlrev_b32 v26, 11, v27")
    a("v_and_b32 v24, 1, v7\nv_lshl_add_u32 v26, v24, 2, v26\nv_lshrrev_b32 v24, 5, v0\nv_lshl_add_u32 v26, v24, 1, v26")
    a("s_lshr_b32 s4, s2, 1\ns_and_b32 s4, s4, 1\ns_lshl_b32 s58, s4, 15")
    a("s_and_b32 s4, s3, 1\ns_lshl_b32 s4, s4, 14\ns_add_u32 s58, s58, s4")
    a("s_lshr_b32 s4, s2, 2\ns_lshl_b32 s4, s4, 5\ns_add_u32 s58, s58, s4")
    a("s_and_b32 s4, s2, 1\ns_lshl_b32 s4, s4, 4\ns_add_u32 s58, s58, s4")
    a("s_lshr_b32 s4, s3, 1\ns_lshl_b32 s4, s4, 3\ns_add_u32 s58, s58, s4")
    loop = g.lab("h2")
    a(f"{loop}:")
    for i in range(4):
        sk = g.lab("h2l")
        a(f"s_mov_b64 exec, s[{80+2*i}:{81+2*i}]\ns_cbranch_execz {sk}")
        a(f"s_add_u32 s4, s56, {i*8192}")
        a(f"buffer_load_dwordx4 v[{HB+i*4}:{HB+i*4+3}], v12, {WS}, s4 offen sc1")
        a(f"{sk}:")
    a("s_waitcnt vmcnt(0)")
    for i in range(4):
        sk = g.lab("h2c")
        b = HB + i*4
        a(f"s_mov_b64 exec, s[{80+2*i}:{81+2*i}]\ns_cbranch_execz {sk}")
        a(f"v_max3_u32 v24, v{b}, v{b+1}, v{b+2}\nv_max_u32 v24, v24, v{b+3}")
        a("v_cmp_ne_u32 vcc, -1, v24")
        a(f"s_andn2_b64 s[{80+2*i}:{81+2*i}], s[{80+2*i}:{81+2*i}], vcc")
        a("s_mov_b64 exec, vcc")
        for k in range(4):
            a(f"v_add_f32 v{120+k}, v{120+k}, v{b+k}")
        a(f"{sk}:")
    a("s_or_b64 s[4:5], s[80:81], s[82:83]\ns_or_b64 s[6:7], s[84:85], s[86:87]\ns_or_b64 s[4:5], s[4:5], s[6:7]")
    done = g.lab("h2done")
    a(f"s_cbranch_scc0 {done}")
    a("s_sub_u32 s51, s51, 1")
    a(f"s_cbranch_scc0 {loop}")
    a(f"{done}:")
    a("s_mov_b64 exec, -1")
    g.nop(2)
    a("v_permlane32_swap_b32 v120, v121\nv_permlane32_swap_b32 v122, v123")
    a("s_nop 0")
    a("v_add_f32 v120, v120, v121\nv_add_f32 v122, v122, v123")
    g.nop(2)
    a("v_permlane16_swap_b32 v120, v122")
    a("s_nop 0")
    a("v_add_f32 v120, v120, v122")
    g.nop(2)
    a("v_add_f32_dpp v121, v120, v120 row_ror:8 row_mask:0xf bank_mask:0xf")
    a("v_cvt_pk_bf16_f32 v121, v121, v121")
    a("s_mov_b32 exec_lo, 0x00ff00ff\ns_mov_b32 exec_hi, 0x00ff00ff")
    a(f"buffer_store_short v121, v26, {OUT}, s58 offen")
    if p.get("stamps"):
        a("s_mov_b64 exec, -1")
        a("s_waitcnt vmcnt(0)")
        g.stamp()
        a("s_cmp_lg_u32 s3, 0\ns_cbranch_scc1 L_exit")
        a("v_writelane_b32 v15, s51, 31")
        a("s_add_u32 s78, s78, 0xff00000\ns_addc_u32 s79, s79, 0")
        a("s_lshl_b32 s4, s2, 7\nv_lshl_add_u32 v24, v0, 2, s4")
        a("s_mov_b64 exec, 0xffffffff")
        a("global_store_dword v24, v15, s[78:79]")
    a("L_exit:")
    a("s_endpgm")
    body = "\n".join(g.o)
    src = HEADER + f"; @launch grid=(256,1,1) block=(512,1,1) lds={L_END}\n" + f""".amdgcn_target "amdgcn-amd-amdhsa--gfx950"
.text
.globl {KNAME}
.p2align 8
.type {KNAME},@function
{KNAME}:
{body}
.section .rodata,"a"
.p2align 6
.amdhsa_kernel {KNAME}
  .amdhsa_next_free_vgpr 256
  .amdhsa_next_free_sgpr 102
  .amdhsa_accum_offset 256
  .amdhsa_group_segment_fixed_size 0
  .amdhsa_kernarg_size 64
  .amdhsa_user_sgpr_count 2
  .amdhsa_user_sgpr_kernarg_segment_ptr 1
  .amdhsa_system_sgpr_workgroup_id_x 1
  .amdhsa_float_denorm_mode_32 3
.end_amdhsa_kernel
"""
    return src

if __name__ == "__main__":
    out = sys.argv[1]
    p = {}
    for kv in sys.argv[2:]:
        k, v = kv.split("=")
        try: v = int(v)
        except ValueError: pass
        if v == "none": v = ""
        p[k] = v
    open(out, "w").write(gen(**p))
    print("lds", L_END)
```

```python
import sys, math, struct

KNAME = "standalone__gqa_block_cached__sampling_kernel"

HEADER = """; Kernarg layout for this problem (64 bytes, ptrs only, base s[0:1]):
"""

WS_Q, WS_ML, WS_OP, WS_OUTP, WS_SIZE = 0, 0x100000, 0x200000, 0x400000, 0x800000
L_P = 0
L_RING = 65536
L_WQ = 65536
L_X = 98304
R = 10
L_MX = L_RING + R * 8192
L_SM = L_MX + 1024
L_OFR = L_SM + 1024
L_QT = L_OFR
L_END = L_OFR + 8192

class G:
    def __init__(self, **p):
        self.o = []
        self.vm = []
        self.p = p
        self.nlab = 0
        self.nstamp = 0
    def a(self, s):
        for l in s.split("\n"):
            self.o.append("    " + l.strip() if not l.strip().endswith(":") else l.strip())
    def c(self, s):
        self.o.append("    ; " + s)
    def lab(self, base):
        self.nlab += 1
        return f"L_{base}_{self.nlab}"
    def vmop(self, s, tag):
        self.a(s); self.vm.append(tag)
    def after(self, tag):
        idx = max(i for i, t in enumerate(self.vm) if t == tag)
        return len(self.vm) - 1 - idx
    def waitvm(self, tag):
        n = self.after(tag)
        assert n <= 63
        self.a(f"s_waitcnt vmcnt({n})")
    def throttle(self, D):
        self.a(f"s_waitcnt vmcnt({D-1})")
    def nop(self, n):
        while n > 0:
            k = min(n, 16)
            self.a(f"s_nop {k-1}")
            n -= k
    def stamp(self, name=""):
        if not self.p.get("stamps"): return
        i = self.nstamp; self.nstamp += 1
        print("stamp", i, name)
        self.a(f"s_memrealtime s[60:61]\ns_waitcnt lgkmcnt(0)\nv_writelane_b32 v15, s60, {i}")

def srd(g, base, plo, size):
    g.a(f"s_mov_b32 s{base}, s{plo}\ns_and_b32 s{base+1}, s{plo+1}, 0xffff\ns_mov_b32 s{base+2}, {size:#x}\ns_mov_b32 s{base+3}, 0x20000")

X, K, V, WQ, WO, OUT, DBG, WS = "s[8:11]", "s[12:15]", "s[16:19]", "s[20:23]", "s[24:27]", "s[28:31]", "s[32:35]", "s[36:39]"

def gen(**p):
    D = p.get("D", 4)
    D0 = p.get("D0", 5)
    POLL_AT = p.get("POLL_AT", 18)
    QLD_AT = p.get("QLD_AT", 22)
    B2_AT = p.get("B2_AT", 26)
    PD0 = p.get("PD0", 7)
    PD = p.get("PD", 5)
    NT = p.get("NT", "nt")
    WNT = p.get("WNT", NT)
    MAP = p.get("MAP", 1)
    WPOS = p.get("WPOS", 32)
    UF = p.get("UF", 8)
    UML = p.get("UML", 20)
    SPIN = p.get("SPIN", 200000)
    g = G(**p)
    a = g.a
    a(f"s_cmp_ge_u32 s2, 256\ns_cbranch_scc1 L_exit")
    a("s_load_dwordx16 s[64:79], s[0:1], 0")
    if p.get("stamps"):
        a("v_mov_b32 v15, 0")
    a("v_lshrrev_b32 v1, 6, v0")
    a("v_and_b32 v0, 63, v0")
    a("v_readfirstlane_b32 s3, v1")
    a("s_and_b32 s4, s2, 7\ns_lshr_b32 s5, s2, 3")
    a("s_lshl_b32 s41, s4, 5\ns_add_u32 s41, s41, s5")
    if MAP == 1:
        a("s_mov_b32 s6, s41")
    else:
        a("s_mov_b32 s6, s2")
    a("s_lshl_b32 s40, s6, 18")
    a("s_lshr_b32 s42, s6, 5")
    a("s_lshr_b32 s43, s6, 3\ns_and_b32 s43, s43, 3")
    a("s_and_b32 s44, s6, 7")
    a("s_lshl_b32 s45, s4, 2\ns_and_b32 s7, s5, 3\ns_add_u32 s45, s45, s7")
    a("s_lshr_b32 s46, s2, 5")
    NP = p.get("NP", 18)
    NCLR = p.get("NCLR", 10)
    a("v_and_b32 v6, 15, v0")
    a("v_lshrrev_b32 v7, 4, v0")
    a("v_lshlrev_b32 v3, 4, v0")
    a("v_and_b32 v9, 1, v7\nv_lshlrev_b32 v9, 1, v9\nv_and_b32 v8, 7, v0\nv_xor_b32 v9, v9, v8\nv_lshlrev_b32 v9, 4, v9")
    a("v_lshrrev_b32 v8, 3, v0\nv_lshl_add_u32 v10, v8, 13, v9\nv_xor_b32 v11, 64, v10")
    a("v_xor_b32 v8, v6, v7\nv_lshlrev_b32 v8, 4, v8")
    a("s_and_b32 s4, s3, 1\ns_lshl_b32 s5, s4, 7\ns_lshl_b32 s4, s4, 14")
    a("v_xor_b32 v36, s5, v8\nv_lshl_add_u32 v36, v7, 11, v36\nv_add_u32 v36, s4, v36")
    a(f"v_xor_b32 v37, 64, v36\nv_add_u32 v37, {8192-1024}, v37")
    a("s_and_b32 s52, s41, 3\ns_lshl_b32 s52, s52, 21\ns_lshl_b32 s53, s3, 18\ns_add_u32 s52, s52, s53\ns_lshr_b32 s53, s41, 2\ns_lshl_b32 s53, s53, 7\ns_add_u32 s52, s52, s53")
    a(f"s_lshl_b32 s53, s3, 12\ns_add_u32 s53, s53, {L_WQ}")
    a("s_lshr_b32 s54, s3, 1\ns_and_b32 s54, s54, 1\ns_lshl_b32 s54, s54, 15\ns_and_b32 s4, s41, 3\ns_lshl_b32 s4, s4, 9\ns_add_u32 s54, s54, s4\ns_lshr_b32 s4, s3, 2\ns_lshl_b32 s4, s4, 8\ns_add_u32 s54, s54, s4")
    a(f"s_lshl_b32 s55, s3, 11\ns_add_u32 s55, s55, {L_X}")
    a("s_waitcnt lgkmcnt(0)")
    g.stamp('start')
    srd(g, 20, 70, 0x800000)
    srd(g, 8, 64, 0x10000)
    for i in range(4):
        a(f"s_add_u32 m0, s53, {i*1024}")
        a(f"s_add_u32 s56, s52, {i*8*8192}")
        g.vmop(f"buffer_load_dwordx4 v{10+(i&1)}, {WQ}, s56 offen {p.get('QNT', NT)} lds", "wq")
    a("s_mov_b32 m0, s55")
    srd(g, 12, 66, 0x4000000)
    g.vmop(f"buffer_load_dwordx4 v36, {X}, s54 offen lds", "x")
    g.vmop(f"buffer_load_dwordx4 v37, {X}, s54 offen offset:1024 lds", "x")
    for i in range(4):
        a(f"v_xor_b32 v{16+i}, {i*64}, v8")
        a(f"v_lshl_add_u32 v{16+i}, v7, 8, v{16+i}")
    a("s_lshl_b32 s96, s3, 13")
    a("s_add_u32 s47, s96, s40")
    a("s_barrier")
    def kinstr(n):
        T, i = n >> 2, n & 3
        t, hf = T >> 1, T & 1
        a(f"s_add_u32 m0, s96, {(T & 1)*4096}")
        a(f"s_add_u32 s57, s47, {t*65536 + hf*4096}")
        g.vmop(f"buffer_load_dwordx4 v{16+i}, {K}, s57 offen offset:{i*1024} {NT} lds", f"ki{n}")
    def kread(T):
        for s_ in range(4):
            r = 128 + (T*4+s_)*4
            a(f"ds_read_b128 v[{r}:{r+3}], v{20+s_} offset:{(T & 1)*4096}")
    for n in range(D0):
        kinstr(n)
    srd(g, 36, 78, WS_SIZE)
    srd(g, 16, 68, 0x4000000)
    srd(g, 24, 72, 0x800000)
    srd(g, 28, 74, 0x10000)
    srd(g, 32, 76, 0x100)
    a("s_lshl_b32 s48, s3, 10\ns_add_u32 s49, s48, %d\ns_add_u32 s48, s48, s40" % L_RING)
    a(f"s_lshr_b32 s4, s3, 2\ns_lshl_b32 s4, s4, 12\ns_add_u32 s4, s4, {L_X}")
    for s_ in range(4):
        a(f"v_xor_b32 v{20+s_}, {s_*64}, v8")
        a(f"v_lshl_add_u32 v{20+s_}, v6, 8, v{20+s_}")
        a(f"v_add_u32 v{44+s_}, s4, v{20+s_}")
        a(f"v_add_u32 v{20+s_}, s96, v{20+s_}")
    a("v_lshrrev_b32 v13, 2, v6")
    a("v_and_b32 v14, 3, v6")
    a("v_and_b32 v9, 1, v7\nv_lshlrev_b32 v9, 1, v9\nv_lshrrev_b32 v10, 1, v13\nv_or_b32 v9, v9, v10\ns_and_b32 s4, s3, 3\nv_xor_b32 v9, s4, v9\nv_lshlrev_b32 v9, 5, v9\nv_lshl_add_u32 v9, v14, 3, v9")
    a(f"v_lshl_add_u32 v11, v7, 3, v13\nv_lshl_add_u32 v11, v11, 7, v9\nv_add_u32 v11, {L_WQ}, v11")
    a("v_lshlrev_b32 v24, 17, v13\nv_lshrrev_b32 v25, 1, v7\nv_lshl_add_u32 v24, v25, 8, v24\nv_lshl_add_u32 v24, v14, 4, v24")
    a("s_lshr_b32 s98, s3, 2\ns_lshl_b32 s98, s98, 19")
    a("s_lshr_b32 s5, s41, 6\ns_lshl_b32 s5, s5, 15\ns_add_u32 s98, s98, s5")
    a("s_and_b32 s5, s41, 3\ns_lshl_b32 s5, s5, 13\ns_add_u32 s98, s98, s5")
    a("s_lshr_b32 s5, s41, 5\ns_and_b32 s5, s5, 1\ns_lshl_b32 s5, s5, 10\ns_add_u32 s98, s98, s5")
    a("s_and_b32 s5, s41, 4\ns_lshl_b32 s5, s5, 10\ns_add_u32 s98, s98, s5")
    a("s_and_b32 s5, s3, 2\ns_lshl_b32 s5, s5, 10\ns_add_u32 s98, s98, s5")
    a("s_and_b32 s5, s3, 1\ns_lshl_b32 s5, s5, 9\ns_add_u32 s98, s98, s5")
    a("s_lshr_b32 s5, s41, 3\ns_and_b32 s5, s5, 3\ns_lshl_b32 s5, s5, 6\ns_add_u32 s98, s98, s5")
    g.c("q projection")
    g.waitvm("x")
    a("s_barrier")
    g.stamp('B1')
    for s_ in range(8):
        for hf in range(2):
            r = 64 + s_*4 + hf*2
            a(f"ds_read_b64_tr_b16 v[{r}:{r+1}], v11 offset:{s_*4096 + hf*512}")
        r = 96 + s_*4
        a(f"ds_read_b128 v[{r}:{r+3}], v{44+(s_&3)} offset:{(s_>>2)*8192}")
        if s_ == 3 or s_ == 7:
            for k in range(s_-3, s_+1):
                a(f"s_waitcnt lgkmcnt({3*(s_-k)})")
                cc = "0" if k == 0 else "v[32:35]"
                a(f"v_mfma_f32_16x16x32_bf16 v[32:35], v[{64+k*4}:{67+k*4}], v[{96+k*4}:{99+k*4}], {cc}")
    a("s_and_b32 s4, s3, 1\ns_lshl_b32 s4, s4, 2")
    a("v_add_u32 v2, s4, v7\nv_lshlrev_b32 v2, 1, v2\nv_xor_b32 v2, v2, v6\nv_lshlrev_b32 v2, 4, v2\nv_lshl_add_u32 v2, v7, 8, v2")
    a("s_nop 1")
    a("v_cvt_pk_bf16_f32 v36, v32, v33\nv_cvt_pk_bf16_f32 v37, v34, v35\nv_cvt_pk_bf16_f32 v38, v32, v33\nv_cvt_pk_bf16_f32 v39, v34, v35")
    g.nop(2)
    a("v_permlane16_swap_b32 v36, v38\nv_permlane16_swap_b32 v37, v39")
    a("s_mov_b32 exec_lo, 0xffff\ns_mov_b32 exec_hi, 0xffff")
    g.vmop(f"buffer_store_dwordx4 v[36:39], v24, {WS}, s98 offen sc1", "qst")
    a("s_mov_b64 exec, -1")
    g.stamp('qst')
    def late_setup():
        a(f"s_lshl_b32 s58, s43, 19\ns_lshl_b32 s4, s44, 13\ns_add_u32 s58, s58, s4\ns_lshl_b32 s4, s42, 10\ns_add_u32 s58, s58, s4\ns_add_u32 s58, s58, {WS_OP:#x}")
        a(f"s_lshl_b32 s59, s46, 3\ns_add_u32 s59, s59, s3\ns_lshl_b32 s59, s59, 6\ns_add_u32 s59, s59, s45\ns_lshl_b32 s59, s59, 10\ns_add_u32 s59, s59, {WS_OUTP:#x}")
        a("v_lshrrev_b32 v12, 2, v0\nv_lshlrev_b32 v12, 11, v12\nv_lshl_add_u32 v12, v14, 6, v12")
        a(f"s_lshl_b32 s62, s43, 14\ns_lshl_b32 s4, s42, 8\ns_add_u32 s62, s62, s4\ns_lshl_b32 s4, s44, 3\ns_add_u32 s62, s62, s4\ns_add_u32 s62, s62, {WS_ML:#x}")
        a("v_and_b32 v28, 1, v7\nv_lshl_add_u32 v28, v28, 2, v13\nv_xor_b32 v28, s3, v28\nv_lshlrev_b32 v28, 5, v28\nv_lshl_add_u32 v28, v14, 3, v28")
        a(f"v_lshl_add_u32 v4, v7, 2, v13\nv_lshl_add_u32 v4, v4, 8, v28\nv_add_u32 v4, {L_RING}, v4")
        a(f"v_add_u32 v5, {5*8192}, v4")
        a(f"v_lshl_add_u32 v29, v7, 3, v13\nv_lshl_add_u32 v29, v29, 8, v28\nv_add_u32 v29, {L_RING}, v29")
        a("s_lshr_b32 s4, s3, 1\ns_and_b32 s4, s4, 1\ns_lshl_b32 s4, s4, 2")
        a("v_add_u32 v30, s4, v7\nv_lshlrev_b32 v30, 1, v30\nv_xor_b32 v30, v30, v6\nv_lshlrev_b32 v30, 4, v30\nv_lshl_add_u32 v30, v7, 11, v30")
        a("s_lshl_b32 s63, s45, 18\ns_lshl_b32 s4, s3, 13\ns_add_u32 s63, s63, s4\ns_lshl_b32 s4, s46, 8\ns_add_u32 s63, s63, s4")
        a("s_lshl_b32 s4, s3, 11\nv_add_u32 v31, s4, v3")
        sc = math.log2(math.e) / math.sqrt(128.0)
        a(f"s_mov_b32 s50, {struct.unpack('<I', struct.pack('<f', sc))[0]:#x}")
        a("v_lshlrev_b32 v10, 2, v0")
        a("s_lshl_b32 s4, s43, 4\ns_bfm_b64 s[52:53], 16, s4")
        a("s_lshl_b32 s54, s42, 2\ns_add_u32 s54, s54, s43\ns_lshl_b32 s54, s54, 15\ns_lshl_b32 s4, s3, 10\ns_add_u32 s54, s54, s4")
        a(f"s_mov_b32 s51, {SPIN}")
        a(f"s_lshl_b32 s4, s3, 10\ns_add_u32 s4, s4, {L_QT}\nv_add_u32 v11, s4, v3")
        a(f"v_add_u32 v1, {L_QT}, v3")
        a("v_mov_b32 v24, -1\nv_mov_b32 v25, -1\nv_mov_b32 v26, -1\nv_mov_b32 v27, -1")
    def flag_store(val):
        lab = g.lab("noflag")
        a(f"s_cmp_lg_u32 s3, 0\ns_cbranch_scc1 {lab}")
        a(f"v_mov_b32 v8, {val}\nv_mov_b32 v9, s41")
        a("s_mov_b64 exec, 1")
        a(f"buffer_store_byte v8, v9, {DBG}, 0 offen sc1")
        a("s_mov_b64 exec, -1")
        a(f"{lab}:")
    items = [("v", u) for u in range(32)]
    items[WPOS:WPOS] = [("w", s) for s in range(4)]
    slot_of = {it: n % R for n, it in enumerate(items)}
    nissued = [0]
    def issue_item():
        n = nissued[0]
        if n >= len(items): return
        kind, u = items[n]
        a(f"s_add_u32 m0, s49, {(n % R)*8192}")
        if kind == "v":
            a(f"s_add_u32 s57, s48, {u*8192}")
            g.vmop(f"buffer_load_dwordx4 v2, {V}, s57 offen {NT} lds", f"v{u}")
        else:
            a(f"s_add_u32 s57, s63, {u*32*2048}")
            g.vmop(f"buffer_load_dwordx4 v30, {WO}, s57 offen {WNT} lds", f"w{u}")
        nissued[0] += 1
    def S(t, hf, qt): return 64 + ((t*2+hf)*2+qt)*4
    def qk(T):
        t, hf = T >> 1, T & 1
        for s_ in range(4):
            for qt in range(2):
                d = S(t, hf, qt)
                kr = 128 + (T*4+s_)*4
                qr = QR + (qt + 2*s_)*4
                cc = "0" if s_ == 0 else f"v[{d}:{d+3}]"
                a(f"v_mfma_f32_16x16x32_bf16 v[{d}:{d+3}], v[{kr}:{kr+3}], v[{qr}:{qr+3}], {cc}")
    def tmax(T):
        t, hf = T >> 1, T & 1
        for qt in range(2):
            d = S(t, hf, qt); m = 24 + qt
            if T == 0:
                a(f"v_max3_f32 v{m}, v{d}, v{d+1}, v{d+2}\nv_max_f32 v{m}, v{m}, v{d+3}")
            else:
                a(f"v_max3_f32 v{m}, v{m}, v{d}, v{d+1}\nv_max3_f32 v{m}, v{m}, v{d+2}, v{d+3}")
    QR = 32
    qk_next = 0
    nread = 0
    b2_done = False
    NB2 = NP + 2*D + 3
    assert NB2 < 32 + D
    QP = 64
    for n in range(D0, 32 + D):
        if n - D >= 0:
            g.waitvm(f"ki{n-D}")
            while (nread + 1)*4 - 1 <= n - D:
                kread(nread); nread += 1
        if n < 32:
            if (n & 3) == 0:
                assert nread >= (n >> 2) - 1
                a("s_waitcnt lgkmcnt(0)")
            kinstr(n)
        else:
            issue_item()
            if n == 32 + D - 1:
                while nissued[0] < PD0: issue_item()
        if n == D0:
            late_setup()
        if n == D0 + 2:
            g.waitvm("qst")
            a("s_barrier")
            flag_store(1)
            g.stamp('qpub')
        if n == NCLR:
            a("s_lshl_b32 s4, s3, 16\ns_add_u32 s4, s4, s58")
            g.vmop(f"buffer_store_dwordx4 v[24:27], v3, {WS}, s4 offen sc1", "clr")
        if n == NCLR + 1:
            lab = g.lab("noml")
            a(f"s_cmp_lg_u32 s3, 0\ns_cbranch_scc1 {lab}")
            a("s_mov_b64 exec, 0xffffffff")
            a(f"buffer_store_dwordx2 v[24:25], v12, {WS}, s62 offen sc1")
            a("s_mov_b64 exec, -1")
            a(f"{lab}:")
            g.vmop(f"buffer_store_dwordx4 v[24:27], v3, {WS}, s59 offen sc1", "clr")
        if n == NCLR + 2:
            a("s_add_u32 s4, s59, 0x8000")
            g.vmop(f"buffer_store_dwordx4 v[24:27], v3, {WS}, s4 offen sc1", "clr")
        if n == NP:
            g.vmop(f"buffer_load_dword v9, v10, {DBG}, 0 offen sc1", "poll")
        if n == NP + D:
            g.waitvm("poll")
            l1, l2 = g.lab("qpoll"), g.lab("qok")
            a(f"{l1}:")
            a("v_and_b32 v9, 0x01010101, v9")
            a("v_cmp_ne_u32 vcc, 0x01010101, v9")
            a("s_and_b64 vcc, vcc, s[52:53]")
            a(f"s_cbranch_scc0 {l2}")
            a("s_sleep 4")
            a(f"buffer_load_dword v9, v10, {DBG}, 0 offen sc1")
            a("s_sub_u32 s51, s51, 1")
            a("s_waitcnt vmcnt(0)")
            a(f"s_cbranch_scc0 {l1}")
            a(f"{l2}:")
            g.stamp('qpoll')
        if NP + D <= n < NP + D + 4:
            kq = n - NP - D
            a(f"s_add_u32 s4, s54, {kq*8192}")
            g.vmop(f"buffer_load_dwordx4 v[{QP+kq*4}:{QP+kq*4+3}], v3, {WS}, s4 offen sc1", "qld")
        if n == NB2:
            g.waitvm("qld")
            for k in range(4):
                for kq in range(4):
                    a(f"v_lshlrev_b32 v{80+kq}, 16, v{QP+kq*4+k}\nv_and_b32 v{84+kq}, 0xffff0000, v{QP+kq*4+k}")
                a("v_add_f32 v80, v80, v81\nv_add_f32 v82, v82, v83\nv_add_f32 v84, v84, v85\nv_add_f32 v86, v86, v87\nv_add_f32 v80, v80, v82\nv_add_f32 v84, v84, v86")
                a(f"v_cvt_pk_bf16_f32 v{88+k}, v80, v84")
            a("ds_write_b128 v11, v[88:91]")
            a("s_waitcnt lgkmcnt(0)")
            a("s_barrier")
            flag_store(3)
            for f in range(8):
                a(f"ds_read_b128 v[{QR+f*4}:{QR+3+f*4}], v1 offset:{f*1024}")
            g.stamp('qfrag')
            b2_done = True
        if b2_done and qk_next < nread:
            a("s_waitcnt lgkmcnt(0)")
            lim = nread if n == 32 + D - 1 else min(nread, qk_next + p.get("QKB", 3))
            while qk_next < lim:
                qk(qk_next)
                if qk_next >= 1 : tmax(qk_next - 1)
                qk_next += 1
    assert qk_next == 8
    g.stamp('qk')
    g.nop(8)
    tmax(7)
    a("v_and_b32 v26, 31, v0\nv_lshlrev_b32 v26, 5, v26\ns_lshl_b32 s4, s3, 2\nv_add_u32 v27, s4, v26")
    a(f"v_add_u32 v27, {L_MX}, v27")
    a("v_permlane16_swap_b32 v24, v25")
    a("s_nop 0")
    a("v_max_f32 v24, v24, v25")
    a("v_mov_b32 v25, v24")
    g.nop(2)
    a("v_permlane32_swap_b32 v24, v25")
    a("s_nop 0")
    a("v_max_f32 v24, v24, v25")
    a("ds_write_b32 v27, v24")
    a(f"v_lshlrev_b32 v10, 5, v6\nv_add_u32 v10, {L_MX}, v10")
    a("s_waitcnt lgkmcnt(0)")
    a("s_barrier")
    for qt in range(2):
        for hfw in range(2):
            r = 32 + (qt*2+hfw)*4
            a(f"ds_read_b128 v[{r}:{r+3}], v10 offset:{qt*512 + hfw*16}")
    a("s_waitcnt lgkmcnt(0)")
    for qt in range(2):
        r = 32 + qt*8
        m = 24 + qt
        a(f"v_max3_f32 v{m}, v{r}, v{r+1}, v{r+2}")
        a(f"v_max3_f32 v{m}, v{m}, v{r+3}, v{r+4}")
        a(f"v_max3_f32 v{m}, v{m}, v{r+5}, v{r+6}")
        a(f"v_max_f32 v{m}, v{m}, v{r+7}")
        a(f"v_mul_f32 v{m}, s50, v{m}")
    a("v_mov_b32 v48, 0\nv_mov_b32 v49, 0")
    for t in range(4):
        for qt in range(2):
            vals = [S(t, hf, qt) + r for hf in range(2) for r in range(4)]
            for v in vals:
                a(f"v_fma_f32 v{v}, v{v}, s50, -v{24+qt}")
            for v in vals:
                a(f"v_exp_f32 v{v}, v{v}")
            pr = 32 + ((t*2+qt) % 4)*4
            a("s_nop 0")
            for k in range(4):
                a(f"v_cvt_pk_bf16_f32 v{pr+k}, v{vals[2*k]}, v{vals[2*k+1]}")
            a(f"ds_write_b128 v31, v[{pr}:{pr+3}] offset:{L_P + t*16384 + qt*1024}")
            a(f"v_add_f32 v50, v{vals[0]}, v{vals[1]}\nv_add_f32 v51, v{vals[2]}, v{vals[3]}\nv_add_f32 v52, v{vals[4]}, v{vals[5]}\nv_add_f32 v53, v{vals[6]}, v{vals[7]}")
            a(f"v_add_f32 v50, v50, v51\nv_add_f32 v52, v52, v53\nv_add_f32 v50, v50, v52\nv_add_f32 v{48+qt}, v{48+qt}, v50")
            if (t*2+qt) % 4 == 3:
                a("s_waitcnt lgkmcnt(0)")
    g.nop(2)
    a("v_permlane16_swap_b32 v48, v49")
    a("s_nop 0")
    a("v_add_f32 v48, v48, v49")
    a("v_mov_b32 v49, v48")
    g.nop(2)
    a("v_permlane32_swap_b32 v48, v49")
    a("s_nop 0")
    a("v_add_f32 v48, v48, v49")
    a(f"ds_write_b32 v27, v48 offset:{L_SM - L_MX}")
    for k in range(8):
        a(f"v_mov_b32 v{16+k}, 0")
    a("s_waitcnt lgkmcnt(0)")
    a("s_barrier")
    g.stamp('softmax')
    lab = g.lab("nomlst")
    a(f"s_cmp_lg_u32 s3, 0\ns_cbranch_scc1 {lab}")
    a(f"v_add_u32 v26, {L_SM}, v26")
    a("ds_read_b128 v[32:35], v26\nds_read_b128 v[36:39], v26 offset:16")
    a("v_and_b32 v40, 16, v0\nv_cmp_ne_u32 vcc, 0, v40")
    g.nop(2)
    a("v_cndmask_b32 v40, v24, v25, vcc")
    a("s_waitcnt lgkmcnt(0)")
    a("v_add_f32 v32, v32, v33\nv_add_f32 v34, v34, v35\nv_add_f32 v36, v36, v37\nv_add_f32 v38, v38, v39\nv_add_f32 v32, v32, v34\nv_add_f32 v36, v36, v38\nv_add_f32 v41, v32, v36")
    a("v_min_u32 v40, -2, v40\nv_min_u32 v41, -2, v41")
    a("s_mov_b64 exec, 0xffffffff")
    a(f"buffer_store_dwordx2 v[40:41], v12, {WS}, s62 offen sc1")
    a("s_mov_b64 exec, -1")
    a(f"{lab}:")
    g.c("V phase")
    def pread(u):
        r = 64 + (u & 1)*8
        a(f"ds_read_b128 v[{r}:{r+3}], v3 offset:{L_P + u*2048}")
        a(f"ds_read_b128 v[{r+4}:{r+7}], v3 offset:{L_P + u*2048 + 1024}")
    def ring_rd(dst, basev_lo, basev_hi, slot, off):
        if slot < 5:
            a(f"ds_read_b64_tr_b16 v[{dst}:{dst+1}], v{basev_lo} offset:{slot*8192 + off}")
        else:
            a(f"ds_read_b64_tr_b16 v[{dst}:{dst+1}], v{basev_hi} offset:{(slot-5)*8192 + off}")
    a(f"v_add_u32 v28, {5*8192}, v29")
    a("v_lshlrev_b32 v10, 2, v0")
    a("v_lshlrev_b32 v11, 6, v6")
    a(f"s_lshl_b32 s55, s45, 11\ns_and_b32 s4, s3, 1\ns_lshl_b32 s4, s4, 10\ns_add_u32 s55, s55, s4\ns_add_u32 s55, s55, {WS_ML:#x}")
    pread(0)
    MLR = 96
    WOR = 128
    nv = 0
    for n, (kind, u) in enumerate(items):
        if kind == "w" and WPOS == 32:
            break
        g.waitvm(f"{kind}{u}")
        a("s_barrier")
        while nissued[0] < min(len(items), n + 1 + PD) and nissued[0] - R <= n - 1:
            issue_item()
        slot = slot_of[(kind, u)]
        if kind == "w":
            for hf in range(2):
                ring_rd(WOR + u*4 + hf*2, 29, 28, slot, hf*1024)
            a("s_waitcnt lgkmcnt(0)")
            continue
        vr = 80 + (u & 1)*4
        for hf in range(2):
            ring_rd(vr + hf*2, 4, 5, slot, hf*4096)
        if u + 1 < 32:
            pread(u + 1)
            a("s_waitcnt lgkmcnt(2)")
        else:
            a("s_waitcnt lgkmcnt(0)")
        pr = 64 + (u & 1)*8
        for qt in range(2):
            a(f"v_mfma_f32_16x16x32_bf16 v[{16+qt*4}:{19+qt*4}], v[{vr}:{vr+3}], v[{pr+qt*4}:{pr+qt*4+3}], v[{16+qt*4}:{19+qt*4}]")
        if u == UF:
            g.vmop(f"buffer_load_dword v9, v10, {DBG}, 0 offen sc1", "poll2")
        if u == UML:
            g.waitvm("poll2")
            l1, l2 = g.lab("fpoll"), g.lab("fok")
            a(f"{l1}:")
            a("v_cmp_ne_u32 vcc, 0x03030303, v9")
            a("s_cmp_eq_u64 vcc, 0")
            a(f"s_cbranch_scc1 {l2}")
            a(f"buffer_load_dword v9, v10, {DBG}, 0 offen sc1")
            a("s_sub_u32 s51, s51, 1")
            a("s_waitcnt vmcnt(0)")
            a(f"s_cbranch_scc0 {l1}")
            a(f"{l2}:")
            for i in range(4):
                g.vmop(f"buffer_load_dwordx4 v[{MLR+i*4}:{MLR+i*4+3}], v11, {WS}, s55 offen offset:{i*16} sc1", "ml")
        if u == UML + PD + 1:
            g.waitvm("ml")
            l1, l2 = g.lab("mlpoll"), g.lab("mlok")
            a(f"{l1}:")
            a(f"v_max3_u32 v24, v{MLR}, v{MLR+1}, v{MLR+2}")
            for k in range(3, 15, 2):
                a(f"v_max3_u32 v24, v24, v{MLR+k}, v{MLR+k+1}")
            a(f"v_max_u32 v24, v24, v{MLR+15}")
            a("v_cmp_eq_u32 vcc, -1, v24")
            a("s_cmp_eq_u64 vcc, 0")
            a(f"s_cbranch_scc1 {l2}")
            for i in range(4):
                a(f"buffer_load_dwordx4 v[{MLR+i*4}:{MLR+i*4+3}], v11, {WS}, s55 offen offset:{i*16} sc1")
            a("s_sub_u32 s51, s51, 1")
            a("s_waitcnt vmcnt(0)")
            a(f"s_cbranch_scc0 {l1}")
            a(f"{l2}:")
            ms = [MLR + 2*c for c in range(8)]
            a(f"v_max3_f32 v24, v{ms[0]}, v{ms[1]}, v{ms[2]}\nv_max3_f32 v24, v24, v{ms[3]}, v{ms[4]}\nv_max3_f32 v24, v24, v{ms[5]}, v{ms[6]}\nv_max_f32 v24, v24, v{ms[7]}")
            for c in range(8):
                a(f"v_sub_f32 v{112+c}, v{ms[c]}, v24")
            for c in range(8):
                a(f"v_exp_f32 v{112+c}, v{112+c}")
            a("s_nop 0")
            a(f"v_mul_f32 v25, v112, v{ms[0]+1}")
            for c in range(1, 8):
                a(f"v_fmac_f32 v25, v{112+c}, v{ms[c]+1}")
            a("v_rcp_f32 v25, v25")
            a("s_nop 0")
            for c in range(8):
                a(f"v_mul_f32 v{112+c}, v{112+c}, v25")
        if u == 26:
            a("v_and_b32 v26, 1, v7\nv_lshl_add_u32 v26, v26, 2, v13\nv_lshlrev_b32 v26, 16, v26\nv_lshl_add_u32 v26, v14, 5, v26\nv_lshrrev_b32 v27, 1, v7\nv_lshl_add_u32 v26, v27, 4, v26")
            a("s_lshl_b32 s4, s3, 7\ns_add_u32 s58, s58, s4")
            a("v_lshlrev_b32 v12, 10, v13\nv_lshl_add_u32 v12, v27, 7, v12\nv_lshl_add_u32 v12, v14, 5, v12\nv_and_b32 v27, 1, v7\nv_lshl_add_u32 v12, v27, 4, v12")
            a(f"s_lshl_b32 s56, s45, 16\ns_and_b32 s4, s3, 1\ns_lshl_b32 s4, s4, 12\ns_add_u32 s56, s56, s4\ns_lshr_b32 s4, s3, 1\ns_lshl_b32 s4, s4, 8\ns_add_u32 s56, s56, s4\ns_add_u32 s56, s56, {WS_OP:#x}")
            for c in range(8):
                a(f"s_mov_b64 s[{80+2*c}:{81+2*c}], -1")
            for k in range(8):
                a(f"v_mov_b32 v{120+k}, 0")
            a(f"s_lshl_b32 s4, s3, 10\ns_add_u32 s4, s4, {L_OFR}\nv_add_u32 v9, s4, v3")
            a(f"v_add_u32 v1, {L_OFR}, v3")
    while nissued[0] < len(items):
        issue_item()
    g.stamp('vdone')
    g.c("hop 1 publish")
    g.nop(8)
    a("v_cvt_pk_bf16_f32 v32, v16, v17\nv_cvt_pk_bf16_f32 v33, v18, v19\nv_cvt_pk_bf16_f32 v34, v20, v21\nv_cvt_pk_bf16_f32 v35, v22, v23")
    a("v_min_u32 v32, -2, v32\nv_min_u32 v33, -2, v33\nv_min_u32 v34, -2, v34\nv_min_u32 v35, -2, v35")
    g.nop(2)
    a("v_permlane16_swap_b32 v32, v34\nv_permlane16_swap_b32 v33, v35")
    a(f"buffer_store_dwordx4 v[32:35], v26, {WS}, s58 offen sc1")
    HB = 160
    if p.get("stamps"): a("v_writelane_b32 v15, s51, 28")
    loop = g.lab("h1")
    a(f"{loop}:")
    if p.get("H1SLEEP"): a(f"s_sleep {p['H1SLEEP']}")
    for c in range(8):
        sk = g.lab("h1l")
        a(f"s_mov_b64 exec, s[{80+2*c}:{81+2*c}]\ns_cbranch_execz {sk}")
        a(f"s_add_u32 s4, s56, {c*8192}")
        a(f"buffer_load_dwordx4 v[{HB+c*4}:{HB+c*4+3}], v12, {WS}, s4 offen sc1")
        a(f"{sk}:")
    a("s_waitcnt vmcnt(0)")
    for c in range(8):
        sk = g.lab("h1c")
        b = HB + c*4
        a(f"s_mov_b64 exec, s[{80+2*c}:{81+2*c}]\ns_cbranch_execz {sk}")
        a(f"v_max3_u32 v24, v{b}, v{b+1}, v{b+2}\nv_max_u32 v24, v24, v{b+3}")
        a("v_cmp_ne_u32 vcc, -1, v24")
        a(f"s_andn2_b64 s[{80+2*c}:{81+2*c}], s[{80+2*c}:{81+2*c}], vcc")
        a("s_mov_b64 exec, vcc")
        for k in range(4):
            a(f"v_lshlrev_b32 v{36+2*k}, 16, v{b+k}\nv_and_b32 v{37+2*k}, 0xffff0000, v{b+k}")
        for k in range(8):
            a(f"v_fmac_f32 v{120+k}, v{36+k}, v{112+c}")
        a(f"{sk}:")
    a("s_or_b64 s[4:5], s[80:81], s[82:83]\ns_or_b64 s[6:7], s[84:85], s[86:87]\ns_or_b64 s[4:5], s[4:5], s[88:89]\ns_or_b64 s[6:7], s[6:7], s[90:91]\ns_or_b64 s[4:5], s[4:5], s[92:93]\ns_or_b64 s[6:7], s[6:7], s[94:95]\ns_or_b64 s[4:5], s[4:5], s[6:7]")
    done = g.lab("h1done")
    a(f"s_cbranch_scc0 {done}")
    a("s_sub_u32 s51, s51, 1")
    a(f"s_cbranch_scc0 {loop}")
    a(f"{done}:")
    a("s_mov_b64 exec, -1")
    g.stamp('hop1')
    for k in range(4):
        a(f"v_cvt_pk_bf16_f32 v{32+k}, v{120+2*k}, v{121+2*k}")
    a("ds_write_b128 v9, v[32:35]")
    a("s_waitcnt lgkmcnt(0)")
    a("s_barrier")
    if WPOS == 32:
        for s in range(4):
            for hf in range(2):
                ring_rd(WOR + s*4 + hf*2, 29, 28, slot_of[("w", s)], hf*1024)
    for f in range(8):
        a(f"ds_read_b128 v[{64+f*4}:{67+f*4}], v1 offset:{f*1024}")
    a("v_lshrrev_b32 v12, 3, v0\nv_lshlrev_b32 v12, 10, v12\nv_and_b32 v27, 7, v0\nv_lshl_add_u32 v12, v27, 4, v12")
    a(f"s_lshr_b32 s56, s2, 1\ns_lshl_b32 s56, s56, 15\ns_and_b32 s4, s2, 1\ns_lshl_b32 s4, s4, 9\ns_add_u32 s56, s56, s4\ns_lshl_b32 s4, s3, 7\ns_add_u32 s56, s56, s4\ns_add_u32 s56, s56, {WS_OUTP:#x}")
    a("s_add_u32 s57, s59, 0x8000")
    for s in range(4):
        a(f"s_waitcnt lgkmcnt({2*(3-s)})")
        for rt in range(2):
            d = 16 + rt*4
            f = 64 + (rt + 2*s)*4
            cc = "0" if s == 0 else f"v[{d}:{d+3}]"
            a(f"v_mfma_f32_16x16x32_bf16 v[{d}:{d+3}], v[{WOR+s*4}:{WOR+s*4+3}], v[{f}:{f+3}], {cc}")
    g.nop(8)
    for k in range(8):
        a(f"v_min_u32 v{16+k}, -2, v{16+k}")
    a(f"buffer_store_dwordx4 v[16:19], v3, {WS}, s59 offen sc1")
    a(f"buffer_store_dwordx4 v[20:23], v3, {WS}, s57 offen sc1")
    g.stamp('h2pub')
    g.c("hop 2")
    a("s_cmp_ge_u32 s3, 4\ns_cbranch_scc1 L_exit")
    for i in range(4):
        a(f"s_mov_b64 s[{80+2*i}:{81+2*i}], -1")
    for k in range(4):
        a(f"v_mov_b32 v{120+k}, 0")
    a("v_lshlrev_b32 v26, 11, v27")
    a("v_and_b32 v24, 1, v7\nv_lshl_add_u32 v26, v24, 2, v26\nv_lshrrev_b32 v24, 5, v0\nv_lshl_add_u32 v26, v24, 1, v26")
    a("s_lshr_b32 s4, s2, 1\ns_and_b32 s4, s4, 1\ns_lshl_b32 s58, s4, 15")
    a("s_and_b32 s4, s3, 1\ns_lshl_b32 s4, s4, 14\ns_add_u32 s58, s58, s4")
    a("s_lshr_b32 s4, s2, 2\ns_lshl_b32 s4, s4, 5\ns_add_u32 s58, s58, s4")
    a("s_and_b32 s4, s2, 1\ns_lshl_b32 s4, s4, 4\ns_add_u32 s58, s58, s4")
    a("s_lshr_b32 s4, s3, 1\ns_lshl_b32 s4, s4, 3\ns_add_u32 s58, s58, s4")
    if p.get("stamps"): a("v_writelane_b32 v15, s51, 29")
    if p.get("H2ACK"):
        a("s_waitcnt vmcnt(0)")
        g.stamp('h2ack')
    if p.get("H2PRE"): a(f"s_sleep {p['H2PRE']}")
    loop = g.lab("h2")
    a(f"{loop}:")
    if p.get("H2SLEEP"): a(f"s_sleep {p['H2SLEEP']}")
    for i in range(4):
        sk = g.lab("h2l")
        a(f"s_mov_b64 exec, s[{80+2*i}:{81+2*i}]\ns_cbranch_execz {sk}")
        a(f"s_add_u32 s4, s56, {i*8192}")
        a(f"buffer_load_dwordx4 v[{HB+i*4}:{HB+i*4+3}], v12, {WS}, s4 offen sc1")
        a(f"{sk}:")
    a("s_waitcnt vmcnt(0)")
    for i in range(4):
        sk = g.lab("h2c")
        b = HB + i*4
        a(f"s_mov_b64 exec, s[{80+2*i}:{81+2*i}]\ns_cbranch_execz {sk}")
        a(f"v_max3_u32 v24, v{b}, v{b+1}, v{b+2}\nv_max_u32 v24, v24, v{b+3}")
        a("v_cmp_ne_u32 vcc, -1, v24")
        a(f"s_andn2_b64 s[{80+2*i}:{81+2*i}], s[{80+2*i}:{81+2*i}], vcc")
        a("s_mov_b64 exec, vcc")
        for k in range(4):
            a(f"v_add_f32 v{120+k}, v{120+k}, v{b+k}")
        a(f"{sk}:")
    a("s_or_b64 s[4:5], s[80:81], s[82:83]\ns_or_b64 s[6:7], s[84:85], s[86:87]\ns_or_b64 s[4:5], s[4:5], s[6:7]")
    done = g.lab("h2done")
    a(f"s_cbranch_scc0 {done}")
    a("s_sub_u32 s51, s51, 1")
    a(f"s_cbranch_scc0 {loop}")
    a(f"{done}:")
    a("s_mov_b64 exec, -1")
    g.stamp('hop2')
    g.nop(2)
    a("v_permlane32_swap_b32 v120, v121\nv_permlane32_swap_b32 v122, v123")
    a("s_nop 0")
    a("v_add_f32 v120, v120, v121\nv_add_f32 v122, v122, v123")
    g.nop(2)
    a("v_permlane16_swap_b32 v120, v122")
    a("s_nop 0")
    a("v_add_f32 v120, v120, v122")
    g.nop(2)
    a("v_add_f32_dpp v121, v120, v120 row_ror:8 row_mask:0xf bank_mask:0xf")
    a("v_cvt_pk_bf16_f32 v121, v121, v121")
    a("s_mov_b32 exec_lo, 0x00ff00ff\ns_mov_b32 exec_hi, 0x00ff00ff")
    a(f"buffer_store_short v121, v26, {OUT}, s58 offen")
    if p.get("stamps"):
        a("s_mov_b64 exec, -1")
        a("s_waitcnt vmcnt(0)")
        g.stamp('end')
        a("s_cmp_lg_u32 s3, 0\ns_cbranch_scc1 L_exit")
        a("v_writelane_b32 v15, s51, 31")
        a("s_add_u32 s78, s78, 0xff00000\ns_addc_u32 s79, s79, 0")
        a("s_lshl_b32 s4, s2, 7\nv_lshl_add_u32 v24, v0, 2, s4")
        a("s_mov_b64 exec, 0xffffffff")
        a("global_store_dword v24, v15, s[78:79]")
    a("L_exit:")
    a("s_endpgm")
    body = "\n".join(g.o)
    src = HEADER + f"; @launch grid=(256,1,1) block=(512,1,1) lds={L_END}\n" + f""".amdgcn_target "amdgcn-amd-amdhsa--gfx950"
.text
.globl {KNAME}
.p2align 8
.type {KNAME},@function
{KNAME}:
{body}
.section .rodata,"a"
.p2align 6
.amdhsa_kernel {KNAME}
  .amdhsa_next_free_vgpr 256
  .amdhsa_next_free_sgpr 102
  .amdhsa_accum_offset 256
  .amdhsa_group_segment_fixed_size 0
  .amdhsa_kernarg_size 64
  .amdhsa_user_sgpr_count 2
  .amdhsa_user_sgpr_kernarg_segment_ptr 1
  .amdhsa_system_sgpr_workgroup_id_x 1
  .amdhsa_float_denorm_mode_32 3
.end_amdhsa_kernel
"""
    return src

if __name__ == "__main__":
    out = sys.argv[1]
    p = {}
    for kv in sys.argv[2:]:
        k, v = kv.split("=")
        try: v = int(v)
        except ValueError: pass
        if v == "none": v = ""
        p[k] = v
    open(out, "w").write(gen(**p))
    print("lds", L_END)
```

```python
import sys, math, struct

KNAME = "standalone__gqa_block_cached__sampling_kernel"

HEADER = """; Kernarg layout for this problem (64 bytes, ptrs only, base s[0:1]):
"""

WS_Q, WS_ML, WS_OP, WS_OUTP, WS_SIZE = 0, 0x100000, 0x200000, 0x400000, 0x800000
L_P = 0
L_RING = 65536
L_WQ = 65536
L_X = 98304
R = 10
L_MX = L_RING + R * 8192
L_SM = L_MX + 1024
L_OFR = L_SM + 1024
L_QT = L_OFR
L_END = L_OFR + 8192

class G:
    def __init__(self, **p):
        self.o = []
        self.vm = []
        self.p = p
        self.nlab = 0
        self.nstamp = 0
    def a(self, s):
        for l in s.split("\n"):
            self.o.append("    " + l.strip() if not l.strip().endswith(":") else l.strip())
    def c(self, s):
        self.o.append("    ; " + s)
    def lab(self, base):
        self.nlab += 1
        return f"L_{base}_{self.nlab}"
    def vmop(self, s, tag):
        self.a(s); self.vm.append(tag)
    def after(self, tag):
        idx = max(i for i, t in enumerate(self.vm) if t == tag)
        return len(self.vm) - 1 - idx
    def waitvm(self, tag):
        n = self.after(tag)
        assert n <= 63
        self.a(f"s_waitcnt vmcnt({n})")
    def throttle(self, D):
        self.a(f"s_waitcnt vmcnt({D-1})")
    def nop(self, n):
        while n > 0:
            k = min(n, 16)
            self.a(f"s_nop {k-1}")
            n -= k
    def stamp(self, name=""):
        if not self.p.get("stamps"): return
        i = self.nstamp; self.nstamp += 1
        print("stamp", i, name)
        self.a(f"s_memrealtime s[60:61]\ns_waitcnt lgkmcnt(0)\nv_writelane_b32 v15, s60, {i}")

def srd(g, base, plo, size):
    g.a(f"s_mov_b32 s{base}, s{plo}\ns_and_b32 s{base+1}, s{plo+1}, 0xffff\ns_mov_b32 s{base+2}, {size:#x}\ns_mov_b32 s{base+3}, 0x20000")

X, K, V, WQ, WO, OUT, DBG, WS = "s[8:11]", "s[12:15]", "s[16:19]", "s[20:23]", "s[24:27]", "s[28:31]", "s[32:35]", "s[36:39]"

def gen(**p):
    D = p.get("D", 4)
    D0 = p.get("D0", 5)
    POLL_AT = p.get("POLL_AT", 18)
    QLD_AT = p.get("QLD_AT", 22)
    B2_AT = p.get("B2_AT", 26)
    PD0 = p.get("PD0", 7)
    PD = p.get("PD", 5)
    NT = p.get("NT", "nt")
    WNT = p.get("WNT", NT)
    MAP = p.get("MAP", 1)
    WPOS = p.get("WPOS", 32)
    UF = p.get("UF", 8)
    UML = p.get("UML", 20)
    SPIN = p.get("SPIN", 200000)
    g = G(**p)
    a = g.a
    a(f"s_cmp_ge_u32 s2, 256\ns_cbranch_scc1 L_exit")
    a("s_load_dwordx16 s[64:79], s[0:1], 0")
    if p.get("stamps"):
        a("v_mov_b32 v15, 0")
    a("v_lshrrev_b32 v1, 6, v0")
    a("v_and_b32 v0, 63, v0")
    a("v_readfirstlane_b32 s3, v1")
    a("s_and_b32 s4, s2, 7\ns_lshr_b32 s5, s2, 3")
    a("s_lshl_b32 s41, s4, 5\ns_add_u32 s41, s41, s5")
    if MAP == 1:
        a("s_mov_b32 s6, s41")
    else:
        a("s_mov_b32 s6, s2")
    a("s_lshl_b32 s40, s6, 18")
    a("s_lshr_b32 s42, s6, 5")
    a("s_lshr_b32 s43, s6, 3\ns_and_b32 s43, s43, 3")
    a("s_and_b32 s44, s6, 7")
    a("s_lshl_b32 s45, s4, 2\ns_and_b32 s7, s5, 3\ns_add_u32 s45, s45, s7")
    a("s_lshr_b32 s46, s2, 5")
    NP = p.get("NP", 18)
    NCLR = p.get("NCLR", 10)
    a("v_and_b32 v6, 15, v0")
    a("v_lshrrev_b32 v7, 4, v0")
    a("v_lshlrev_b32 v3, 4, v0")
    a("v_and_b32 v9, 1, v7\nv_lshlrev_b32 v9, 1, v9\nv_and_b32 v8, 7, v0\nv_xor_b32 v9, v9, v8\nv_lshlrev_b32 v9, 4, v9")
    a("v_lshrrev_b32 v8, 3, v0\nv_lshl_add_u32 v10, v8, 13, v9\nv_xor_b32 v11, 64, v10")
    a("v_xor_b32 v8, v6, v7\nv_lshlrev_b32 v8, 4, v8")
    a("s_and_b32 s4, s3, 1\ns_lshl_b32 s5, s4, 7\ns_lshl_b32 s4, s4, 14")
    a("v_xor_b32 v36, s5, v8\nv_lshl_add_u32 v36, v7, 11, v36\nv_add_u32 v36, s4, v36")
    a(f"v_xor_b32 v37, 64, v36\nv_add_u32 v37, {8192-1024}, v37")
    a("s_and_b32 s52, s41, 3\ns_lshl_b32 s52, s52, 21\ns_lshl_b32 s53, s3, 18\ns_add_u32 s52, s52, s53\ns_lshr_b32 s53, s41, 2\ns_lshl_b32 s53, s53, 7\ns_add_u32 s52, s52, s53")
    a(f"s_lshl_b32 s53, s3, 12\ns_add_u32 s53, s53, {L_WQ}")
    a("s_lshr_b32 s54, s3, 1\ns_and_b32 s54, s54, 1\ns_lshl_b32 s54, s54, 15\ns_and_b32 s4, s41, 3\ns_lshl_b32 s4, s4, 9\ns_add_u32 s54, s54, s4\ns_lshr_b32 s4, s3, 2\ns_lshl_b32 s4, s4, 8\ns_add_u32 s54, s54, s4")
    a(f"s_lshl_b32 s55, s3, 11\ns_add_u32 s55, s55, {L_X}")
    a("s_waitcnt lgkmcnt(0)")
    g.stamp('start')
    srd(g, 20, 70, 0x800000)
    srd(g, 8, 64, 0x10000)
    for i in range(4):
        a(f"s_add_u32 m0, s53, {i*1024}")
        a(f"s_add_u32 s56, s52, {i*8*8192}")
        g.vmop(f"buffer_load_dwordx4 v{10+(i&1)}, {WQ}, s56 offen {p.get('QNT', NT)} lds", "wq")
    a("s_mov_b32 m0, s55")
    srd(g, 12, 66, 0x4000000)
    g.vmop(f"buffer_load_dwordx4 v36, {X}, s54 offen lds", "x")
    g.vmop(f"buffer_load_dwordx4 v37, {X}, s54 offen offset:1024 lds", "x")
    for i in range(4):
        a(f"v_xor_b32 v{16+i}, {i*64}, v8")
        a(f"v_lshl_add_u32 v{16+i}, v7, 8, v{16+i}")
    a("s_lshl_b32 s96, s3, 13")
    a("s_add_u32 s47, s96, s40")
    a("s_barrier")
    def kinstr(n):
        T, i = n >> 2, n & 3
        t, hf = T >> 1, T & 1
        a(f"s_add_u32 m0, s96, {(T & 1)*4096}")
        a(f"s_add_u32 s57, s47, {t*65536 + hf*4096}")
        g.vmop(f"buffer_load_dwordx4 v{16+i}, {K}, s57 offen offset:{i*1024} {NT} lds", f"ki{n}")
    def kread(T):
        for s_ in range(4):
            r = 128 + (T*4+s_)*4
            a(f"ds_read_b128 v[{r}:{r+3}], v{20+s_} offset:{(T & 1)*4096}")
    for n in range(D0):
        kinstr(n)
    srd(g, 36, 78, WS_SIZE)
    srd(g, 16, 68, 0x4000000)
    srd(g, 24, 72, 0x800000)
    srd(g, 28, 74, 0x10000)
    srd(g, 32, 76, 0x100)
    a("s_lshl_b32 s48, s3, 10\ns_add_u32 s49, s48, %d\ns_add_u32 s48, s48, s40" % L_RING)
    a(f"s_lshr_b32 s4, s3, 2\ns_lshl_b32 s4, s4, 12\ns_add_u32 s4, s4, {L_X}")
    for s_ in range(4):
        a(f"v_xor_b32 v{20+s_}, {s_*64}, v8")
        a(f"v_lshl_add_u32 v{20+s_}, v6, 8, v{20+s_}")
        a(f"v_add_u32 v{44+s_}, s4, v{20+s_}")
        a(f"v_add_u32 v{20+s_}, s96, v{20+s_}")
    a("v_lshrrev_b32 v13, 2, v6")
    a("v_and_b32 v14, 3, v6")
    a("v_and_b32 v9, 1, v7\nv_lshlrev_b32 v9, 1, v9\nv_lshrrev_b32 v10, 1, v13\nv_or_b32 v9, v9, v10\ns_and_b32 s4, s3, 3\nv_xor_b32 v9, s4, v9\nv_lshlrev_b32 v9, 5, v9\nv_lshl_add_u32 v9, v14, 3, v9")
    a(f"v_lshl_add_u32 v11, v7, 3, v13\nv_lshl_add_u32 v11, v11, 7, v9\nv_add_u32 v11, {L_WQ}, v11")
    a("v_lshlrev_b32 v24, 17, v13\nv_lshrrev_b32 v25, 1, v7\nv_lshl_add_u32 v24, v25, 8, v24\nv_lshl_add_u32 v24, v14, 4, v24")
    a("s_lshr_b32 s98, s3, 2\ns_lshl_b32 s98, s98, 19")
    a("s_lshr_b32 s5, s41, 6\ns_lshl_b32 s5, s5, 15\ns_add_u32 s98, s98, s5")
    a("s_and_b32 s5, s41, 3\ns_lshl_b32 s5, s5, 13\ns_add_u32 s98, s98, s5")
    a("s_lshr_b32 s5, s41, 5\ns_and_b32 s5, s5, 1\ns_lshl_b32 s5, s5, 10\ns_add_u32 s98, s98, s5")
    a("s_and_b32 s5, s41, 4\ns_lshl_b32 s5, s5, 10\ns_add_u32 s98, s98, s5")
    a("s_and_b32 s5, s3, 2\ns_lshl_b32 s5, s5, 10\ns_add_u32 s98, s98, s5")
    a("s_and_b32 s5, s3, 1\ns_lshl_b32 s5, s5, 9\ns_add_u32 s98, s98, s5")
    a("s_lshr_b32 s5, s41, 3\ns_and_b32 s5, s5, 3\ns_lshl_b32 s5, s5, 6\ns_add_u32 s98, s98, s5")
    g.c("q projection")
    g.waitvm("x")
    a("s_barrier")
    g.stamp('B1')
    for s_ in range(8):
        for hf in range(2):
            r = 64 + s_*4 + hf*2
            a(f"ds_read_b64_tr_b16 v[{r}:{r+1}], v11 offset:{s_*4096 + hf*512}")
        r = 96 + s_*4
        a(f"ds_read_b128 v[{r}:{r+3}], v{44+(s_&3)} offset:{(s_>>2)*8192}")
        if s_ == 3 or s_ == 7:
            for k in range(s_-3, s_+1):
                a(f"s_waitcnt lgkmcnt({3*(s_-k)})")
                cc = "0" if k == 0 else "v[32:35]"
                a(f"v_mfma_f32_16x16x32_bf16 v[32:35], v[{64+k*4}:{67+k*4}], v[{96+k*4}:{99+k*4}], {cc}")
    a("s_and_b32 s4, s3, 1\ns_lshl_b32 s4, s4, 2")
    a("v_add_u32 v2, s4, v7\nv_lshlrev_b32 v2, 1, v2\nv_xor_b32 v2, v2, v6\nv_lshlrev_b32 v2, 4, v2\nv_lshl_add_u32 v2, v7, 8, v2")
    a("s_nop 1")
    a("v_cvt_pk_bf16_f32 v36, v32, v33\nv_cvt_pk_bf16_f32 v37, v34, v35\nv_cvt_pk_bf16_f32 v38, v32, v33\nv_cvt_pk_bf16_f32 v39, v34, v35")
    g.nop(2)
    a("v_permlane16_swap_b32 v36, v38\nv_permlane16_swap_b32 v37, v39")
    a("s_mov_b32 exec_lo, 0xffff\ns_mov_b32 exec_hi, 0xffff")
    g.vmop(f"buffer_store_dwordx4 v[36:39], v24, {WS}, s98 offen sc1", "qst")
    a("s_mov_b64 exec, -1")
    g.stamp('qst')
    def late_setup():
        a(f"s_lshl_b32 s58, s43, 19\ns_lshl_b32 s4, s44, 13\ns_add_u32 s58, s58, s4\ns_lshl_b32 s4, s42, 10\ns_add_u32 s58, s58, s4\ns_add_u32 s58, s58, {WS_OP:#x}")
        a(f"s_lshl_b32 s59, s46, 3\ns_add_u32 s59, s59, s3\ns_lshl_b32 s59, s59, 6\ns_add_u32 s59, s59, s45\ns_lshl_b32 s59, s59, 10\ns_add_u32 s59, s59, {WS_OUTP:#x}")
        a("v_lshrrev_b32 v12, 2, v0\nv_lshlrev_b32 v12, 11, v12\nv_lshl_add_u32 v12, v14, 6, v12")
        a(f"s_lshl_b32 s62, s43, 14\ns_lshl_b32 s4, s42, 8\ns_add_u32 s62, s62, s4\ns_lshl_b32 s4, s44, 3\ns_add_u32 s62, s62, s4\ns_add_u32 s62, s62, {WS_ML:#x}")
        a("v_and_b32 v28, 1, v7\nv_lshl_add_u32 v28, v28, 2, v13\nv_xor_b32 v28, s3, v28\nv_lshlrev_b32 v28, 5, v28\nv_lshl_add_u32 v28, v14, 3, v28")
        a(f"v_lshl_add_u32 v4, v7, 2, v13\nv_lshl_add_u32 v4, v4, 8, v28\nv_add_u32 v4, {L_RING}, v4")
        a(f"v_add_u32 v5, {5*8192}, v4")
        a(f"v_lshl_add_u32 v29, v7, 3, v13\nv_lshl_add_u32 v29, v29, 8, v28\nv_add_u32 v29, {L_RING}, v29")
        a("s_lshr_b32 s4, s3, 1\ns_and_b32 s4, s4, 1\ns_lshl_b32 s4, s4, 2")
        a("v_add_u32 v30, s4, v7\nv_lshlrev_b32 v30, 1, v30\nv_xor_b32 v30, v30, v6\nv_lshlrev_b32 v30, 4, v30\nv_lshl_add_u32 v30, v7, 11, v30")
        a("s_lshl_b32 s63, s45, 18\ns_lshl_b32 s4, s3, 13\ns_add_u32 s63, s63, s4\ns_lshl_b32 s4, s46, 8\ns_add_u32 s63, s63, s4")
        a("s_lshl_b32 s4, s3, 11\nv_add_u32 v31, s4, v3")
        sc = math.log2(math.e) / math.sqrt(128.0)
        a(f"s_mov_b32 s50, {struct.unpack('<I', struct.pack('<f', sc))[0]:#x}")
        a("v_lshlrev_b32 v10, 2, v0")
        a("s_lshl_b32 s4, s43, 4\ns_bfm_b64 s[52:53], 16, s4")
        a("s_lshl_b32 s54, s42, 2\ns_add_u32 s54, s54, s43\ns_lshl_b32 s54, s54, 15\ns_lshl_b32 s4, s3, 10\ns_add_u32 s54, s54, s4")
        a(f"s_mov_b32 s51, {SPIN}")
        a(f"s_lshl_b32 s4, s3, 10\ns_add_u32 s4, s4, {L_QT}\nv_add_u32 v11, s4, v3")
        a(f"v_add_u32 v1, {L_QT}, v3")
        a("v_mov_b32 v24, -1\nv_mov_b32 v25, -1\nv_mov_b32 v26, -1\nv_mov_b32 v27, -1")
    def flag_store(val):
        lab = g.lab("noflag")
        a(f"s_cmp_lg_u32 s3, 0\ns_cbranch_scc1 {lab}")
        a(f"v_mov_b32 v8, {val}\nv_mov_b32 v9, s41")
        a("s_mov_b64 exec, 1")
        a(f"buffer_store_byte v8, v9, {DBG}, 0 offen sc1")
        a("s_mov_b64 exec, -1")
        a(f"{lab}:")
    items = [("v", u) for u in range(32)]
    items[WPOS:WPOS] = [("w", s) for s in range(4)]
    slot_of = {it: n % R for n, it in enumerate(items)}
    nissued = [0]
    def issue_item():
        n = nissued[0]
        if n >= len(items): return
        kind, u = items[n]
        a(f"s_add_u32 m0, s49, {(n % R)*8192}")
        if kind == "v":
            a(f"s_add_u32 s57, s48, {u*8192}")
            g.vmop(f"buffer_load_dwordx4 v2, {V}, s57 offen {NT} lds", f"v{u}")
        else:
            a(f"s_add_u32 s57, s63, {u*32*2048}")
            g.vmop(f"buffer_load_dwordx4 v30, {WO}, s57 offen {WNT} lds", f"w{u}")
        nissued[0] += 1
    def S(t, hf, qt): return 64 + ((t*2+hf)*2+qt)*4
    def qk(T):
        t, hf = T >> 1, T & 1
        for s_ in range(4):
            for qt in range(2):
                d = S(t, hf, qt)
                kr = 128 + (T*4+s_)*4
                qr = QR + (qt + 2*s_)*4
                cc = "0" if s_ == 0 else f"v[{d}:{d+3}]"
                a(f"v_mfma_f32_16x16x32_bf16 v[{d}:{d+3}], v[{kr}:{kr+3}], v[{qr}:{qr+3}], {cc}")
    def tmax(T):
        t, hf = T >> 1, T & 1
        for qt in range(2):
            d = S(t, hf, qt); m = 24 + qt
            if T == 0:
                a(f"v_max3_f32 v{m}, v{d}, v{d+1}, v{d+2}\nv_max_f32 v{m}, v{m}, v{d+3}")
            else:
                a(f"v_max3_f32 v{m}, v{m}, v{d}, v{d+1}\nv_max3_f32 v{m}, v{m}, v{d+2}, v{d+3}")
    QR = 32
    qk_next = 0
    nread = 0
    b2_done = False
    NB2 = NP + 2*D + 3
    assert NB2 < 32 + D
    QP = 64
    for n in range(D0, 32 + D):
        if n - D >= 0:
            g.waitvm(f"ki{n-D}")
            while (nread + 1)*4 - 1 <= n - D:
                kread(nread); nread += 1
        if n < 32:
            if (n & 3) == 0:
                assert nread >= (n >> 2) - 1
                a("s_waitcnt lgkmcnt(0)")
            kinstr(n)
        else:
            issue_item()
            if n == 32 + D - 1:
                while nissued[0] < PD0: issue_item()
        if n == D0:
            late_setup()
        if n == D0 + 2:
            g.waitvm("qst")
            a("s_barrier")
            flag_store(1)
            g.stamp('qpub')
        if n == NCLR:
            a("s_lshl_b32 s4, s3, 16\ns_add_u32 s4, s4, s58")
            g.vmop(f"buffer_store_dwordx4 v[24:27], v3, {WS}, s4 offen sc1", "clr")
        if n == NCLR + 1:
            lab = g.lab("noml")
            a(f"s_cmp_lg_u32 s3, 0\ns_cbranch_scc1 {lab}")
            a("s_mov_b64 exec, 0xffffffff")
            a(f"buffer_store_dwordx2 v[24:25], v12, {WS}, s62 offen sc1")
            a("s_mov_b64 exec, -1")
            a(f"{lab}:")
            g.vmop(f"buffer_store_dwordx4 v[24:27], v3, {WS}, s59 offen sc1", "clr")
        if n == NCLR + 2:
            a("s_add_u32 s4, s59, 0x8000")
            g.vmop(f"buffer_store_dwordx4 v[24:27], v3, {WS}, s4 offen sc1", "clr")
        if n == NP:
            g.vmop(f"buffer_load_dword v9, v10, {DBG}, 0 offen sc1", "poll")
        if n == NP + D:
            g.waitvm("poll")
            l1, l2 = g.lab("qpoll"), g.lab("qok")
            a(f"{l1}:")
            a("v_and_b32 v9, 0x01010101, v9")
            a("v_cmp_ne_u32 vcc, 0x01010101, v9")
            a("s_and_b64 vcc, vcc, s[52:53]")
            a(f"s_cbranch_scc0 {l2}")
            a("s_sleep 4")
            a(f"buffer_load_dword v9, v10, {DBG}, 0 offen sc1")
            a("s_sub_u32 s51, s51, 1")
            a("s_waitcnt vmcnt(0)")
            a(f"s_cbranch_scc0 {l1}")
            a(f"{l2}:")
            g.stamp('qpoll')
        if NP + D <= n < NP + D + 4:
            kq = n - NP - D
            a(f"s_add_u32 s4, s54, {kq*8192}")
            g.vmop(f"buffer_load_dwordx4 v[{QP+kq*4}:{QP+kq*4+3}], v3, {WS}, s4 offen sc1", "qld")
        if n == NB2:
            g.waitvm("qld")
            for k in range(4):
                for kq in range(4):
                    a(f"v_lshlrev_b32 v{80+kq}, 16, v{QP+kq*4+k}\nv_and_b32 v{84+kq}, 0xffff0000, v{QP+kq*4+k}")
                a("v_add_f32 v80, v80, v81\nv_add_f32 v82, v82, v83\nv_add_f32 v84, v84, v85\nv_add_f32 v86, v86, v87\nv_add_f32 v80, v80, v82\nv_add_f32 v84, v84, v86")
                a(f"v_cvt_pk_bf16_f32 v{88+k}, v80, v84")
            a("ds_write_b128 v11, v[88:91]")
            a("s_waitcnt lgkmcnt(0)")
            a("s_barrier")
            flag_store(3)
            for f in range(8):
                a(f"ds_read_b128 v[{QR+f*4}:{QR+3+f*4}], v1 offset:{f*1024}")
            g.stamp('qfrag')
            b2_done = True
        if b2_done and qk_next < nread:
            a("s_waitcnt lgkmcnt(0)")
            lim = nread if n == 32 + D - 1 else min(nread, qk_next + p.get("QKB", 3))
            while qk_next < lim:
                qk(qk_next)
                if qk_next >= 1 : tmax(qk_next - 1)
                qk_next += 1
    assert qk_next == 8
    g.stamp('qk')
    g.nop(8)
    tmax(7)
    a("v_and_b32 v26, 31, v0\nv_lshlrev_b32 v26, 5, v26\ns_lshl_b32 s4, s3, 2\nv_add_u32 v27, s4, v26")
    a(f"v_add_u32 v27, {L_MX}, v27")
    a("v_permlane16_swap_b32 v24, v25")
    a("s_nop 0")
    a("v_max_f32 v24, v24, v25")
    a("v_mov_b32 v25, v24")
    g.nop(2)
    a("v_permlane32_swap_b32 v24, v25")
    a("s_nop 0")
    a("v_max_f32 v24, v24, v25")
    a("ds_write_b32 v27, v24")
    a(f"v_lshlrev_b32 v10, 5, v6\nv_add_u32 v10, {L_MX}, v10")
    a("s_waitcnt lgkmcnt(0)")
    a("s_barrier")
    for qt in range(2):
        for hfw in range(2):
            r = 32 + (qt*2+hfw)*4
            a(f"ds_read_b128 v[{r}:{r+3}], v10 offset:{qt*512 + hfw*16}")
    a("s_waitcnt lgkmcnt(0)")
    for qt in range(2):
        r = 32 + qt*8
        m = 24 + qt
        a(f"v_max3_f32 v{m}, v{r}, v{r+1}, v{r+2}")
        a(f"v_max3_f32 v{m}, v{m}, v{r+3}, v{r+4}")
        a(f"v_max3_f32 v{m}, v{m}, v{r+5}, v{r+6}")
        a(f"v_max_f32 v{m}, v{m}, v{r+7}")
        a(f"v_mul_f32 v{m}, s50, v{m}")
    a("v_mov_b32 v48, 0\nv_mov_b32 v49, 0")
    for t in range(4):
        for qt in range(2):
            vals = [S(t, hf, qt) + r for hf in range(2) for r in range(4)]
            for v in vals:
                a(f"v_fma_f32 v{v}, v{v}, s50, -v{24+qt}")
            for v in vals:
                a(f"v_exp_f32 v{v}, v{v}")
            pr = 32 + ((t*2+qt) % 4)*4
            a("s_nop 0")
            for k in range(4):
                a(f"v_cvt_pk_bf16_f32 v{pr+k}, v{vals[2*k]}, v{vals[2*k+1]}")
            a(f"ds_write_b128 v31, v[{pr}:{pr+3}] offset:{L_P + t*16384 + qt*1024}")
            a(f"v_add_f32 v50, v{vals[0]}, v{vals[1]}\nv_add_f32 v51, v{vals[2]}, v{vals[3]}\nv_add_f32 v52, v{vals[4]}, v{vals[5]}\nv_add_f32 v53, v{vals[6]}, v{vals[7]}")
            a(f"v_add_f32 v50, v50, v51\nv_add_f32 v52, v52, v53\nv_add_f32 v50, v50, v52\nv_add_f32 v{48+qt}, v{48+qt}, v50")
            if (t*2+qt) % 4 == 3:
                a("s_waitcnt lgkmcnt(0)")
    g.nop(2)
    a("v_permlane16_swap_b32 v48, v49")
    a("s_nop 0")
    a("v_add_f32 v48, v48, v49")
    a("v_mov_b32 v49, v48")
    g.nop(2)
    a("v_permlane32_swap_b32 v48, v49")
    a("s_nop 0")
    a("v_add_f32 v48, v48, v49")
    a(f"ds_write_b32 v27, v48 offset:{L_SM - L_MX}")
    for k in range(8):
        a(f"v_mov_b32 v{16+k}, 0")
    a("s_waitcnt lgkmcnt(0)")
    a("s_barrier")
    g.stamp('softmax')
    lab = g.lab("nomlst")
    a(f"s_cmp_lg_u32 s3, 0\ns_cbranch_scc1 {lab}")
    a(f"v_add_u32 v26, {L_SM}, v26")
    a("ds_read_b128 v[32:35], v26\nds_read_b128 v[36:39], v26 offset:16")
    a("v_and_b32 v40, 16, v0\nv_cmp_ne_u32 vcc, 0, v40")
    g.nop(2)
    a("v_cndmask_b32 v40, v24, v25, vcc")
    a("s_waitcnt lgkmcnt(0)")
    a("v_add_f32 v32, v32, v33\nv_add_f32 v34, v34, v35\nv_add_f32 v36, v36, v37\nv_add_f32 v38, v38, v39\nv_add_f32 v32, v32, v34\nv_add_f32 v36, v36, v38\nv_add_f32 v41, v32, v36")
    a("v_min_u32 v40, -2, v40\nv_min_u32 v41, -2, v41")
    a("s_mov_b64 exec, 0xffffffff")
    a(f"buffer_store_dwordx2 v[40:41], v12, {WS}, s62 offen sc1")
    a("s_mov_b64 exec, -1")
    a(f"{lab}:")
    g.c("V phase")
    def pread(u):
        r = 64 + (u & 1)*8
        a(f"ds_read_b128 v[{r}:{r+3}], v3 offset:{L_P + u*2048}")
        a(f"ds_read_b128 v[{r+4}:{r+7}], v3 offset:{L_P + u*2048 + 1024}")
    def ring_rd(dst, basev_lo, basev_hi, slot, off):
        if slot < 5:
            a(f"ds_read_b64_tr_b16 v[{dst}:{dst+1}], v{basev_lo} offset:{slot*8192 + off}")
        else:
            a(f"ds_read_b64_tr_b16 v[{dst}:{dst+1}], v{basev_hi} offset:{(slot-5)*8192 + off}")
    a(f"v_add_u32 v28, {5*8192}, v29")
    a("v_lshlrev_b32 v10, 2, v0")
    a("v_lshlrev_b32 v11, 6, v6")
    a(f"s_lshl_b32 s55, s45, 11\ns_and_b32 s4, s3, 1\ns_lshl_b32 s4, s4, 10\ns_add_u32 s55, s55, s4\ns_add_u32 s55, s55, {WS_ML:#x}")
    pread(0)
    MLR = 96
    WOR = 128
    nv = 0
    for n, (kind, u) in enumerate(items):
        if kind == "w" and WPOS == 32:
            break
        g.waitvm(f"{kind}{u}")
        a("s_barrier")
        while nissued[0] < min(len(items), n + 1 + PD) and nissued[0] - R <= n - 1:
            issue_item()
        slot = slot_of[(kind, u)]
        if kind == "w":
            for hf in range(2):
                ring_rd(WOR + u*4 + hf*2, 29, 28, slot, hf*1024)
            a("s_waitcnt lgkmcnt(0)")
            continue
        vr = 80 + (u & 1)*4
        for hf in range(2):
            ring_rd(vr + hf*2, 4, 5, slot, hf*4096)
        if u + 1 < 32:
            pread(u + 1)
            a("s_waitcnt lgkmcnt(2)")
        else:
            a("s_waitcnt lgkmcnt(0)")
        pr = 64 + (u & 1)*8
        for qt in range(2):
            a(f"v_mfma_f32_16x16x32_bf16 v[{16+qt*4}:{19+qt*4}], v[{vr}:{vr+3}], v[{pr+qt*4}:{pr+qt*4+3}], v[{16+qt*4}:{19+qt*4}]")
        if u == UF:
            g.vmop(f"buffer_load_dword v9, v10, {DBG}, 0 offen sc1", "poll2")
        if u == UML:
            g.waitvm("poll2")
            l1, l2 = g.lab("fpoll"), g.lab("fok")
            a(f"{l1}:")
            a("v_cmp_ne_u32 vcc, 0x03030303, v9")
            a("s_cmp_eq_u64 vcc, 0")
            a(f"s_cbranch_scc1 {l2}")
            a(f"buffer_load_dword v9, v10, {DBG}, 0 offen sc1")
            a("s_sub_u32 s51, s51, 1")
            a("s_waitcnt vmcnt(0)")
            a(f"s_cbranch_scc0 {l1}")
            a(f"{l2}:")
            for i in range(4):
                g.vmop(f"buffer_load_dwordx4 v[{MLR+i*4}:{MLR+i*4+3}], v11, {WS}, s55 offen offset:{i*16} sc1", "ml")
        if u == UML + PD + 1:
            g.waitvm("ml")
            l1, l2 = g.lab("mlpoll"), g.lab("mlok")
            a(f"{l1}:")
            a(f"v_max3_u32 v24, v{MLR}, v{MLR+1}, v{MLR+2}")
            for k in range(3, 15, 2):
                a(f"v_max3_u32 v24, v24, v{MLR+k}, v{MLR+k+1}")
            a(f"v_max_u32 v24, v24, v{MLR+15}")
            a("v_cmp_eq_u32 vcc, -1, v24")
            a("s_cmp_eq_u64 vcc, 0")
            a(f"s_cbranch_scc1 {l2}")
            for i in range(4):
                a(f"buffer_load_dwordx4 v[{MLR+i*4}:{MLR+i*4+3}], v11, {WS}, s55 offen offset:{i*16} sc1")
            a("s_sub_u32 s51, s51, 1")
            a("s_waitcnt vmcnt(0)")
            a(f"s_cbranch_scc0 {l1}")
            a(f"{l2}:")
            ms = [MLR + 2*c for c in range(8)]
            a(f"v_max3_f32 v24, v{ms[0]}, v{ms[1]}, v{ms[2]}\nv_max3_f32 v24, v24, v{ms[3]}, v{ms[4]}\nv_max3_f32 v24, v24, v{ms[5]}, v{ms[6]}\nv_max_f32 v24, v24, v{ms[7]}")
            for c in range(8):
                a(f"v_sub_f32 v{112+c}, v{ms[c]}, v24")
            for c in range(8):
                a(f"v_exp_f32 v{112+c}, v{112+c}")
            a("s_nop 0")
            a(f"v_mul_f32 v25, v112, v{ms[0]+1}")
            for c in range(1, 8):
                a(f"v_fmac_f32 v25, v{112+c}, v{ms[c]+1}")
            a("v_rcp_f32 v25, v25")
            a("s_nop 0")
            for c in range(8):
                a(f"v_mul_f32 v{112+c}, v{112+c}, v25")
        if u == 26:
            a("v_and_b32 v26, 1, v7\nv_lshl_add_u32 v26, v26, 2, v13\nv_lshlrev_b32 v26, 16, v26\nv_lshl_add_u32 v26, v14, 5, v26\nv_lshrrev_b32 v27, 1, v7\nv_lshl_add_u32 v26, v27, 4, v26")
            a("s_lshl_b32 s4, s3, 7\ns_add_u32 s58, s58, s4")
            a("v_lshlrev_b32 v12, 10, v13\nv_lshl_add_u32 v12, v27, 7, v12\nv_lshl_add_u32 v12, v14, 5, v12\nv_and_b32 v27, 1, v7\nv_lshl_add_u32 v12, v27, 4, v12")
            a(f"s_lshl_b32 s56, s45, 16\ns_and_b32 s4, s3, 1\ns_lshl_b32 s4, s4, 12\ns_add_u32 s56, s56, s4\ns_lshr_b32 s4, s3, 1\ns_lshl_b32 s4, s4, 8\ns_add_u32 s56, s56, s4\ns_add_u32 s56, s56, {WS_OP:#x}")
            for c in range(8):
                a(f"s_mov_b64 s[{80+2*c}:{81+2*c}], -1")
            for k in range(8):
                a(f"v_mov_b32 v{120+k}, 0")
            a(f"s_lshl_b32 s4, s3, 10\ns_add_u32 s4, s4, {L_OFR}\nv_add_u32 v9, s4, v3")
            a(f"v_add_u32 v1, {L_OFR}, v3")
    while nissued[0] < len(items):
        issue_item()
    g.stamp('vdone')
    g.c("hop 1 publish")
    g.nop(8)
    a("v_cvt_pk_bf16_f32 v32, v16, v17\nv_cvt_pk_bf16_f32 v33, v18, v19\nv_cvt_pk_bf16_f32 v34, v20, v21\nv_cvt_pk_bf16_f32 v35, v22, v23")
    a("v_min_u32 v32, -2, v32\nv_min_u32 v33, -2, v33\nv_min_u32 v34, -2, v34\nv_min_u32 v35, -2, v35")
    g.nop(2)
    a("v_permlane16_swap_b32 v32, v34\nv_permlane16_swap_b32 v33, v35")
    a(f"buffer_store_dwordx4 v[32:35], v26, {WS}, s58 offen sc1")
    HB = 160
    if p.get("stamps"): a("v_writelane_b32 v15, s51, 28")
    loop = g.lab("h1")
    a(f"{loop}:")
    if p.get("H1SLEEP"): a(f"s_sleep {p['H1SLEEP']}")
    for c in range(8):
        sk = g.lab("h1l")
        a(f"s_mov_b64 exec, s[{80+2*c}:{81+2*c}]\ns_cbranch_execz {sk}")
        a(f"s_add_u32 s4, s56, {c*8192}")
        a(f"buffer_load_dwordx4 v[{HB+c*4}:{HB+c*4+3}], v12, {WS}, s4 offen sc1")
        a(f"{sk}:")
    a("s_waitcnt vmcnt(0)")
    for c in range(8):
        sk = g.lab("h1c")
        b = HB + c*4
        a(f"s_mov_b64 exec, s[{80+2*c}:{81+2*c}]\ns_cbranch_execz {sk}")
        a(f"v_max3_u32 v24, v{b}, v{b+1}, v{b+2}\nv_max_u32 v24, v24, v{b+3}")
        a("v_cmp_ne_u32 vcc, -1, v24")
        a(f"s_andn2_b64 s[{80+2*c}:{81+2*c}], s[{80+2*c}:{81+2*c}], vcc")
        a("s_mov_b64 exec, vcc")
        for k in range(4):
            a(f"v_lshlrev_b32 v{36+2*k}, 16, v{b+k}\nv_and_b32 v{37+2*k}, 0xffff0000, v{b+k}")
        for k in range(8):
            a(f"v_fmac_f32 v{120+k}, v{36+k}, v{112+c}")
        a(f"{sk}:")
    a("s_or_b64 s[4:5], s[80:81], s[82:83]\ns_or_b64 s[6:7], s[84:85], s[86:87]\ns_or_b64 s[4:5], s[4:5], s[88:89]\ns_or_b64 s[6:7], s[6:7], s[90:91]\ns_or_b64 s[4:5], s[4:5], s[92:93]\ns_or_b64 s[6:7], s[6:7], s[94:95]\ns_or_b64 s[4:5], s[4:5], s[6:7]")
    done = g.lab("h1done")
    a(f"s_cbranch_scc0 {done}")
    a("s_sub_u32 s51, s51, 1")
    a(f"s_cbranch_scc0 {loop}")
    a(f"{done}:")
    a("s_mov_b64 exec, -1")
    g.stamp('hop1')
    for k in range(4):
        a(f"v_cvt_pk_bf16_f32 v{32+k}, v{120+2*k}, v{121+2*k}")
    a("ds_write_b128 v9, v[32:35]")
    a("s_waitcnt lgkmcnt(0)")
    a("s_barrier")
    if WPOS == 32:
        for s in range(4):
            for hf in range(2):
                ring_rd(WOR + s*4 + hf*2, 29, 28, slot_of[("w", s)], hf*1024)
    for f in range(8):
        a(f"ds_read_b128 v[{64+f*4}:{67+f*4}], v1 offset:{f*1024}")
    a("v_lshrrev_b32 v12, 3, v0\nv_lshlrev_b32 v12, 10, v12\nv_and_b32 v27, 7, v0\nv_lshl_add_u32 v12, v27, 4, v12")
    a(f"s_lshr_b32 s56, s2, 1\ns_lshl_b32 s56, s56, 15\ns_and_b32 s4, s2, 1\ns_lshl_b32 s4, s4, 9\ns_add_u32 s56, s56, s4\ns_lshl_b32 s4, s3, 7\ns_add_u32 s56, s56, s4\ns_add_u32 s56, s56, {WS_OUTP:#x}")
    a("s_add_u32 s57, s59, 0x8000")
    for s in range(4):
        a(f"s_waitcnt lgkmcnt({2*(3-s)})")
        for rt in range(2):
            d = 16 + rt*4
            f = 64 + (rt + 2*s)*4
            cc = "0" if s == 0 else f"v[{d}:{d+3}]"
            a(f"v_mfma_f32_16x16x32_bf16 v[{d}:{d+3}], v[{WOR+s*4}:{WOR+s*4+3}], v[{f}:{f+3}], {cc}")
    g.nop(8)
    for k in range(8):
        a(f"v_min_u32 v{16+k}, -2, v{16+k}")
    a(f"buffer_store_dwordx4 v[16:19], v3, {WS}, s59 offen sc1")
    a(f"buffer_store_dwordx4 v[20:23], v3, {WS}, s57 offen sc1")
    g.stamp('h2pub')
    g.c("hop 2")
    a("s_cmp_ge_u32 s3, 4\ns_cbranch_scc1 L_exit")
    for i in range(4):
        a(f"s_mov_b64 s[{80+2*i}:{81+2*i}], -1")
    for k in range(4):
        a(f"v_mov_b32 v{120+k}, 0")
    a("v_lshlrev_b32 v26, 11, v27")
    a("v_and_b32 v24, 1, v7\nv_lshl_add_u32 v26, v24, 2, v26\nv_lshrrev_b32 v24, 5, v0\nv_lshl_add_u32 v26, v24, 1, v26")
    a("s_lshr_b32 s4, s2, 1\ns_and_b32 s4, s4, 1\ns_lshl_b32 s58, s4, 15")
    a("s_and_b32 s4, s3, 1\ns_lshl_b32 s4, s4, 14\ns_add_u32 s58, s58, s4")
    a("s_lshr_b32 s4, s2, 2\ns_lshl_b32 s4, s4, 5\ns_add_u32 s58, s58, s4")
    a("s_and_b32 s4, s2, 1\ns_lshl_b32 s4, s4, 4\ns_add_u32 s58, s58, s4")
    a("s_lshr_b32 s4, s3, 1\ns_lshl_b32 s4, s4, 3\ns_add_u32 s58, s58, s4")
    if p.get("stamps"): a("v_writelane_b32 v15, s51, 29")
    if p.get("H2ACK"):
        a("s_waitcnt vmcnt(0)")
        g.stamp('h2ack')
    if p.get("H2PRE"): a(f"s_sleep {p['H2PRE']}")
    loop = g.lab("h2")
    a(f"{loop}:")
    if p.get("H2SLEEP"): a(f"s_sleep {p['H2SLEEP']}")
    for i in range(4):
        sk = g.lab("h2l")
        a(f"s_mov_b64 exec, s[{80+2*i}:{81+2*i}]\ns_cbranch_execz {sk}")
        a(f"s_add_u32 s4, s56, {i*8192}")
        a(f"buffer_load_dwordx4 v[{HB+i*4}:{HB+i*4+3}], v12, {WS}, s4 offen sc1")
        a(f"{sk}:")
    a("s_waitcnt vmcnt(0)")
    for i in range(4):
        sk = g.lab("h2c")
        b = HB + i*4
        a(f"s_mov_b64 exec, s[{80+2*i}:{81+2*i}]\ns_cbranch_execz {sk}")
        a(f"v_max3_u32 v24, v{b}, v{b+1}, v{b+2}\nv_max_u32 v24, v24, v{b+3}")
        a("v_cmp_ne_u32 vcc, -1, v24")
        a(f"s_andn2_b64 s[{80+2*i}:{81+2*i}], s[{80+2*i}:{81+2*i}], vcc")
        a("s_mov_b64 exec, vcc")
        for k in range(4):
            a(f"v_add_f32 v{120+k}, v{120+k}, v{b+k}")
        a(f"{sk}:")
    a("s_or_b64 s[4:5], s[80:81], s[82:83]\ns_or_b64 s[6:7], s[84:85], s[86:87]\ns_or_b64 s[4:5], s[4:5], s[6:7]")
    done = g.lab("h2done")
    a(f"s_cbranch_scc0 {done}")
    a("s_sub_u32 s51, s51, 1")
    a(f"s_cbranch_scc0 {loop}")
    a(f"{done}:")
    a("s_mov_b64 exec, -1")
    g.stamp('hop2')
    g.nop(2)
    a("v_permlane32_swap_b32 v120, v121\nv_permlane32_swap_b32 v122, v123")
    a("s_nop 0")
    a("v_add_f32 v120, v120, v121\nv_add_f32 v122, v122, v123")
    g.nop(2)
    a("v_permlane16_swap_b32 v120, v122")
    a("s_nop 0")
    a("v_add_f32 v120, v120, v122")
    g.nop(2)
    a("v_add_f32_dpp v121, v120, v120 row_ror:8 row_mask:0xf bank_mask:0xf")
    a("v_cvt_pk_bf16_f32 v121, v121, v121")
    a("s_mov_b32 exec_lo, 0x00ff00ff\ns_mov_b32 exec_hi, 0x00ff00ff")
    a(f"buffer_store_short v121, v26, {OUT}, s58 offen")
    if p.get("stamps"):
        a("s_mov_b64 exec, -1")
        a("s_waitcnt vmcnt(0)")
        g.stamp('end')
        a("s_cmp_lg_u32 s3, 0\ns_cbranch_scc1 L_exit")
        a("v_writelane_b32 v15, s51, 31")
        if p.get("DBGSTAMP") is not None:
            a(f"s_cmp_lg_u32 s2, {p['DBGSTAMP']}\ns_cbranch_scc1 L_exit")
            a("v_readlane_b32 s4, v15, 0\ns_nop 3\nv_subrev_u32 v15, s4, v15\nv_lshlrev_b32 v24, 2, v0")
            a("s_mov_b64 exec, 0xffff")
            a(f"buffer_store_dword v15, v24, {DBG}, 0 offen sc1")
            a("s_branch L_exit")
        a("s_add_u32 s78, s78, 0xff00000\ns_addc_u32 s79, s79, 0")
        a("s_lshl_b32 s4, s2, 7\nv_lshl_add_u32 v24, v0, 2, s4")
        a("s_mov_b64 exec, 0xffffffff")
        a("global_store_dword v24, v15, s[78:79]")
    a("L_exit:")
    a("s_endpgm")
    body = "\n".join(g.o)
    src = HEADER + f"; @launch grid=(256,1,1) block=(512,1,1) lds={L_END}\n" + f""".amdgcn_target "amdgcn-amd-amdhsa--gfx950"
.text
.globl {KNAME}
.p2align 8
.type {KNAME},@function
{KNAME}:
{body}
.section .rodata,"a"
.p2align 6
.amdhsa_kernel {KNAME}
  .amdhsa_next_free_vgpr 256
  .amdhsa_next_free_sgpr 102
  .amdhsa_accum_offset 256
  .amdhsa_group_segment_fixed_size 0
  .amdhsa_kernarg_size 64
  .amdhsa_user_sgpr_count 2
  .amdhsa_user_sgpr_kernarg_segment_ptr 1
  .amdhsa_system_sgpr_workgroup_id_x 1
  .amdhsa_float_denorm_mode_32 3
.end_amdhsa_kernel
"""
    return src

if __name__ == "__main__":
    out = sys.argv[1]
    p = {}
    for kv in sys.argv[2:]:
        k, v = kv.split("=")
        try: v = int(v)
        except ValueError: pass
        if v == "none": v = ""
        p[k] = v
    open(out, "w").write(gen(**p))
    print("lds", L_END)
```
